```python
import torch

def _softmax(x, axis=-1):
    return torch.softmax(x, dim=axis)
def _gelu(x):
    return torch.nn.functional.gelu(x, approximate="tanh")
def _silu(x):
    return torch.nn.functional.silu(x)
def _sigmoid(x):
    return torch.sigmoid(x)
def _layernorm(x, axis=-1, eps=1e-5):
    m = x.mean(dim=axis, keepdim=True)
    v = x.var(dim=axis, keepdim=True, unbiased=False)
    return (x - m) / torch.sqrt(v + eps)
def _scatter_add(tgt, idx, src, axis=0):
    return tgt.clone().index_add_(axis, idx, src)
def _segment_sum(src, seg, n):
    out = torch.zeros((n,) + src.shape[1:], dtype=src.dtype)
    return out.index_add_(0, seg, src)
def _pad(x, pw):
    flat = tuple(v for pair in reversed(pw) for v in pair)
    return torch.nn.functional.pad(x, flat)

kernel_name = 'standalone__kv_cache_quant_int4_int2_kv_with_per_channel_or_per_token_scales__sampling'

def setup_inputs():

    _w = (lambda a: (lambda t: t.to(torch.bfloat16) if t.is_floating_point() else t)(torch.as_tensor(a)))
    B = 8
    Sq = 4
    Skv = 2048
    Hq = 32
    Hkv = 16
    Dh = 128
    bits = 8
    G = 128
    if G <= 0 or G >= Skv:
        G = max(1, Skv // 2)
    Skv = (Skv // G) * G
    ngk = Skv // G
    qmax = (1 << bits) - 1
    return {
        "q": _w((lambda *s: torch.randn(*s, dtype=torch.bfloat16) * 0.4)(B, Hq, Sq, Dh)),
        "qk": _w(torch.randint(0, qmax + 1, (B, Hkv, Skv, Dh)).to(torch.int32)),
        "qv": _w(torch.randint(0, qmax + 1, (B, Hkv, Skv, Dh)).to(torch.int32)),
        "k_scales": _w(torch.abs((lambda *s: torch.randn(*s, dtype=torch.bfloat16) * 0.4)(B, Hkv, ngk, Dh)) * 0.05 + 0.02),
        "k_zeros": _w((lambda *s: torch.randn(*s, dtype=torch.bfloat16) * 0.4)(B, Hkv, ngk, Dh) + float(qmax) / 2.0),
        "v_scales": _w(torch.abs((lambda *s: torch.randn(*s, dtype=torch.bfloat16) * 0.05)(B, Hkv, Skv, 1)) * 0.05 + 0.02),
        "v_zeros": _w((lambda *s: torch.randn(*s, dtype=torch.bfloat16) * 0.05)(B, Hkv, Skv, 1) + float(qmax) / 2.0),
    }

def reference(q, qk, qv, k_scales, k_zeros, v_scales, v_zeros):
    B, Hq, Sq, Dh = q.shape
    Hkv, Skv = qk.shape[1], qk.shape[2]
    ngk = k_scales.shape[2]
    G = Skv // ngk
    ks = (lambda x, n, axis: torch.repeat_interleave(x, n, dim=axis))(k_scales, G, axis=2)
    kz = (lambda x, n, axis: torch.repeat_interleave(x, n, dim=axis))(k_zeros, G, axis=2)
    k = ((lambda x, dt: x.to(dt))(qk, q.dtype) - kz) * ks
    v = ((lambda x, dt: x.to(dt))(qv, q.dtype) - v_zeros) * v_scales
    rep = Hq // Hkv
    if rep > 1:
        k = (lambda x, n, axis: torch.repeat_interleave(x, n, dim=axis))(k, rep, axis=1)
        v = (lambda x, n, axis: torch.repeat_interleave(x, n, dim=axis))(v, rep, axis=1)
    scale = float(Dh) ** -0.5
    logits = torch.einsum("bhqd,bhkd->bhqk", q, k) * scale
    p = _softmax(logits, axis=-1)
    o = torch.einsum("bhqk,bhkd->bhqd", p, v)
    return o
```

```python
import struct, sys, math

KNAME = "standalone__kv_cache_quant_int4_int2_kv_with_per_channel_or_per_token_scales__sampling_kernel"
HEADER = open("standalone__kv_cache_quant_int4_int2_kv_with_per_channel_or_per_token_scales__sampling.s.ref").read().split("; Override launch")[0]

def f32hex(x):
    return "0x%08x" % struct.unpack("<I", struct.pack("<f", x))[0]

C_SCALE = (128.0 ** -0.5) * 1.4426950408889634

class Gen:
    def __init__(self, NW=4, order="contig", ldflags="nt", stamp=False):
        self.NW = NW
        self.order = order
        self.ldflags = ldflags
        self.stamp = stamp
        self.L = []
        self.lbl = 0

    def A(self, s):
        self.L.append("  " + s)

    def label(self, s):
        self.L.append(s + ":")

    def newlabel(self, p="L"):
        self.lbl += 1
        return f"{p}_{self.lbl}"

    vTID = 0; vLANE = 1; vOK = 2; vOV = 3; vOS = 4; vLT = 5
    vT = 6
    vM = 14; vLs = 15
    vQB = 16
    vD = 36
    vS = 52
    vVF = 60
    vPB = 68
    vTP = 72
    vO = 80
    vCR = 112
    vVS = 116; vVZ = 120
    vRK = 124
    vRV = 188
    NV = 252
    sK = 24; sV = 28; sVS = 32; sVZ = 36
    sTMP = 40
    sMASK = 44
    sC = 46; sNC = 47
    sW = 48; sBH = 49; sHALF = 50
    sOFF = 51
    sOFS = 52
    sCNT = 53
    sSTEP = 54
    sX = 55; sY = 56; sZ = 57
    sE = 58
    sLQ = 60

    TBL = 0
    def lds_layout(self):
        self.NG = 8
        self.PART = self.NG * 5120
        self.STAT = self.PART + self.NW * 4224
        self.LDS = self.STAT + self.NW * 64

    def srd(self, d, ptr, nbytes):
        self.A(f"s_mov_b32 s{d}, s{ptr}")
        self.A(f"s_and_b32 s{d+1}, s{ptr+1}, 0xffff")
        self.A(f"s_mov_b32 s{d+2}, {nbytes}")
        self.A(f"s_mov_b32 s{d+3}, 0x20000")

    def ld_k(self, a):
        for i in range(4):
            r = self.vRK + a*16 + i*4
            self.A(f"buffer_load_dwordx4 v[{r}:{r+3}], v{self.vOK}, s[{self.sK}:{self.sK+3}], s{self.sOFF} offen offset:{a*1024+i*128} {self.ldflags}")
    def ld_sz(self):
        self.A(f"buffer_load_dwordx4 v[{self.vVS}:{self.vVS+3}], v{self.vOS}, s[{self.sVS}:{self.sVS+3}], s{self.sOFS} offen")
        self.A(f"buffer_load_dwordx4 v[{self.vVZ}:{self.vVZ+3}], v{self.vOS}, s[{self.sVZ}:{self.sVZ+3}], s{self.sOFS} offen")
    def ld_v(self, h):
        for ab in range(8):
            r = self.vRV + h*32 + ab*4
            self.A(f"buffer_load_dwordx4 v[{r}:{r+3}], v{self.vOV}, s[{self.sV}:{self.sV+3}], s{self.sOFF} offen offset:{ab*512+h*256} {self.ldflags}")
    def ld_qb(self):
        self.A(f"v_add_u32 v{self.vT}, s{self.sLQ}, v{self.vLT}")
        for it in range(5):
            r = self.vQB + it*4
            self.A(f"ds_read_b128 v[{r}:{r+3}], v{self.vT} offset:{it*1024}")

    def set_step_offsets(self):
        self.A(f"s_lshl_b32 s{self.sX}, s{self.sBH}, 20")
        self.A(f"s_lshl_b32 s{self.sOFF}, s{self.sSTEP}, 14")
        self.A(f"s_add_u32 s{self.sOFF}, s{self.sOFF}, s{self.sX}")
        self.A(f"s_lshr_b32 s{self.sOFS}, s{self.sOFF}, 8")
        self.A(f"s_lshr_b32 s{self.sX}, s{self.sSTEP}, 2")
        self.A(f"s_and_b32 s{self.sX}, s{self.sX}, {self.NG-1}")
        self.A(f"s_mul_i32 s{self.sLQ}, s{self.sX}, 5120")

    def xlane(self, op, x, t):
        self.A(f"v_mov_b32 v{t}, v{x}")
        self.A("s_nop 1")
        self.A(f"v_permlane16_swap_b32 v{t}, v{x}")
        self.A(f"{op} v{x}, v{x}, v{t}")
        self.A(f"v_mov_b32 v{t}, v{x}")
        self.A("s_nop 1")
        self.A(f"v_permlane32_swap_b32 v{t}, v{x}")
        self.A(f"{op} v{x}, v{x}, v{t}")

    def mfma(self, d, a, b, c):
        cs = "0" if c is None else f"v[{c}:{c+3}]"
        self.A(f"v_mfma_f32_16x16x32_bf16 v[{d}:{d+3}], v[{a}:{a+3}], v[{b}:{b+3}], {cs}")

    def dppadd(self, a):
        d = self.vD + a*4
        for b in range(2):
            self.A(f"v_add_f32_dpp v{self.vS+2*a+b}, v{d+2*b+1}, v{d+2*b} row_ror:8 row_mask:0xf bank_mask:0xf")

    def step(self, pf):
        QB = self.vQB
        Bhi0, Bhi1, Blo0, Blo1, C0 = QB, QB+4, QB+8, QB+12, QB+16
        q = [("K0",4),("K1",4),("K2",4),("K3",4),("SZ",2),("V0",8),("V1",8)]
        def wait_for(name):
            idx = [i for i,(n,_) in enumerate(q) if n == name][0]
            n_after = sum(c for _,c in q[idx+1:])
            del q[:idx+1]
            return n_after
        for a in range(4):
            n = wait_for(f"K{a}")
            if a == 0:
                self.A(f"s_waitcnt vmcnt({n}) lgkmcnt(0)")
            else:
                self.A(f"s_waitcnt vmcnt({n})")
            R = self.vRK + a*16
            for k in range(16):
                self.A(f"v_cvt_f32_i32 v{R+k}, v{R+k}")
            for mm in range(2):
                for k in range(4):
                    self.A(f"v_cvt_pk_bf16_f32 v{R+mm*8+k}, v{R+mm*8+2*k}, v{R+mm*8+2*k+1}")
            if a > 0:
                self.dppadd(a-1)
            else:
                self.A("s_nop 1")
            D = self.vD + a*4
            self.mfma(D, R, Bhi0, C0)
            self.mfma(D, R+8, Bhi1, D)
            self.mfma(D, R, Blo0, D)
            self.mfma(D, R+8, Blo1, D)
            if pf:
                self.ld_k(a); q.append((f"nK{a}",4))
        if pf:
            self.ld_qb()
        else:
            self.A("s_nop 7")
        self.dppadd(3)
        S = self.vS; T = self.vT
        t, u = T+1, T+2
        self.A(f"v_max3_f32 v{t}, v{S}, v{S+1}, v{S+2}")
        self.A(f"v_max3_f32 v{t}, v{t}, v{S+3}, v{S+4}")
        self.A(f"v_max3_f32 v{t}, v{t}, v{S+5}, v{S+6}")
        self.A(f"v_max_f32 v{t}, v{t}, v{S+7}")
        self.xlane("v_max_f32", t, u)
        skip = self.newlabel("Lskip")
        self.A(f"v_cmp_gt_f32 vcc, v{t}, v{self.vM}")
        self.A(f"s_and_b64 s[{self.sE}:{self.sE+1}], vcc, s[{self.sMASK}:{self.sMASK+1}]")
        self.A(f"s_cbranch_scc0 {skip}")
        self.A(f"v_max_f32 v{t}, v{t}, v{self.vM}")
        self.A(f"v_sub_f32 v{u}, v{self.vM}, v{t}")
        self.A(f"v_mul_f32 v{u}, s{self.sC}, v{u}")
        self.A(f"v_exp_f32 v{u}, v{u}")
        self.A(f"v_mov_b32 v{self.vM}, v{t}")
        for k in range(32):
            self.A(f"v_mul_f32 v{self.vO+k}, v{u}, v{self.vO+k}")
        for k in range(4):
            self.A(f"v_mul_f32 v{self.vCR+k}, v{u}, v{self.vCR+k}")
        self.A(f"v_mul_f32 v{self.vLs}, v{u}, v{self.vLs}")
        self.label(skip)
        self.A(f"v_mul_f32 v{t}, s{self.sNC}, v{self.vM}")
        for j in range(8):
            self.A(f"v_fma_f32 v{S+j}, v{S+j}, s{self.sC}, v{t}")
        for j in range(8):
            self.A(f"v_exp_f32 v{S+j}, v{S+j}")
        n = wait_for("SZ")
        self.A(f"s_waitcnt vmcnt({n})")
        VF = self.vVF
        for k in range(4):
            self.A(f"v_lshlrev_b32 v{VF+2*k}, 16, v{self.vVS+k}")
            self.A(f"v_and_b32 v{VF+2*k+1}, 0xffff0000, v{self.vVS+k}")
        for j in range(8):
            self.A(f"v_add_f32 v{self.vLs}, v{self.vLs}, v{S+j}")
        for j in range(8):
            self.A(f"v_mul_f32 v{S+j}, v{S+j}, v{VF+j}")
        for a in range(4):
            self.A(f"v_cvt_pk_bf16_f32 v{self.vPB+a}, v{S+2*a}, v{S+2*a+1}")
        self.A("s_nop 1")
        self.mfma(self.vCR, self.vVZ, self.vPB, self.vCR)
        if pf:
            self.ld_sz(); q.append(("nSZ",2))
        TP = self.vTP
        for h in range(2):
            n = wait_for(f"V{h}")
            self.A(f"s_waitcnt vmcnt({n})")
            R = self.vRV + h*32
            for k in range(32):
                self.A(f"v_cvt_f32_i32 v{R+k}, v{R+k}")
            def pk(c):
                for a in range(4):
                    self.A(f"v_cvt_pk_bf16_f32 v{TP+(c&1)*4+a}, v{R+(2*a)*4+c}, v{R+(2*a+1)*4+c}")
            def mf(c):
                o = self.vO + (h*4+c)*4
                self.mfma(o, TP+(c&1)*4, self.vPB, o)
            pk(0); pk(1); mf(0); pk(2); mf(1); pk(3); mf(2); self.A("s_nop 0"); mf(3)
            if pf:
                self.ld_v(h); q.append((f"nV{h}",8))

    def build(self):
        NW = self.NW
        self.lds_layout()
        SPW = 32 // NW
        GPW = self.NG // NW
        A = self.A
        L = self.L
        L.append(HEADER.rstrip("\n"))
        L.append(f"; @launch grid=(256,1,1) block=({NW*64},1,1) lds={self.LDS}")
        L.append('.amdgcn_target "amdgcn-amd-amdhsa--gfx950"')
        L.append(".text")
        L.append(f".globl {KNAME}")
        L.append(".p2align 8")
        L.append(f".type {KNAME},@function")
        L.append(f"{KNAME}:")
        A("s_cmp_ge_u32 s2, 256")
        A("s_cbranch_scc1 L_end")
        A("s_load_dwordx16 s[4:19], s[0:1], 0")
        A("s_load_dwordx4 s[20:23], s[0:1], 64")
        if self.stamp:
            A("s_memrealtime s[62:63]")
        T = self.vT
        A(f"v_lshrrev_b32 v{T}, 6, v0")
        A(f"v_and_b32 v{self.vLANE}, 63, v0")
        A(f"s_lshr_b32 s{self.sBH}, s2, 1")
        A(f"v_readfirstlane_b32 s{self.sW}, v{T}")
        A(f"s_and_b32 s{self.sHALF}, s2, 1")
        n_, g_ = T+1, T+2
        A(f"v_and_b32 v{n_}, 15, v{self.vLANE}")
        A(f"v_lshrrev_b32 v{g_}, 4, v{self.vLANE}")
        A(f"v_lshrrev_b32 v{T+3}, 2, v{n_}")
        A(f"v_lshlrev_b32 v{self.vOK}, 12, v{T+3}")
        A(f"v_bfe_u32 v{T+3}, v{n_}, 1, 1")
        A(f"v_lshl_add_u32 v{self.vOK}, v{T+3}, 9, v{self.vOK}")
        A(f"v_and_b32 v{T+3}, 1, v{n_}")
        A(f"v_lshl_add_u32 v{self.vOK}, v{T+3}, 6, v{self.vOK}")
        A(f"v_lshl_add_u32 v{self.vOK}, v{g_}, 4, v{self.vOK}")
        A(f"v_lshlrev_b32 v{T+4}, 5, v{T+3}")
        A(f"v_lshl_add_u32 v{T+4}, v{g_}, 3, v{T+4}")
        A(f"v_lshrrev_b32 v{T+3}, 3, v{n_}")
        A(f"v_lshlrev_b32 v{T+5}, 5, v{T+3}")
        A(f"v_lshl_add_u32 v{T+5}, v{g_}, 3, v{T+5}")
        A(f"v_and_b32 v{T+3}, 7, v{n_}")
        A(f"v_lshl_add_u32 v{T+6}, v{T+3}, 8, v{T+5}")
        A(f"v_lshlrev_b32 v{self.vOV}, 12, v{g_}")
        A(f"v_lshl_add_u32 v{self.vOV}, v{n_}, 4, v{self.vOV}")
        A(f"v_lshlrev_b32 v{self.vOS}, 4, v{g_}")
        A(f"v_lshlrev_b32 v{self.vLT}, 4, v{self.vLANE}")
        A(f"s_mov_b32 s{self.sMASK}, 0x00ff00ff")
        A(f"s_mov_b32 s{self.sMASK+1}, 0x00ff00ff")
        A(f"s_mov_b32 s{self.sC}, {f32hex(C_SCALE)}")
        A(f"s_mov_b32 s{self.sNC}, {f32hex(-C_SCALE)}")
        A(f"s_lshl_b32 s{self.sSTEP}, s{self.sHALF}, 5")
        if self.order == "contig":
            A(f"s_mul_i32 s{self.sX}, s{self.sW}, {SPW}")
            A(f"s_add_u32 s{self.sSTEP}, s{self.sSTEP}, s{self.sX}")
            stride = 1
        else:
            A(f"s_add_u32 s{self.sSTEP}, s{self.sSTEP}, s{self.sW}")
            stride = NW
        A("s_waitcnt lgkmcnt(0)")
        self.srd(self.sK, 6, 0x8000000)
        self.srd(self.sV, 8, 0x8000000)
        self.srd(self.sVS, 14, 8*16*2048*2)
        self.srd(self.sVZ, 16, 8*16*2048*2)
        self.srd(self.sTMP, 4, 8*32*4*128*2)
        A(f"s_lshl_b32 s{self.sX}, s{self.sBH}, 11")
        for i in range(4):
            A(f"buffer_load_dwordx2 v[{16+2*i}:{17+2*i}], v{T+6}, s[{self.sTMP}:{self.sTMP+3}], s{self.sX} offen offset:{64*i}")
        A(f"s_lshl_b32 s{self.sY}, s{self.sHALF}, 3")
        A(f"s_mul_i32 s{self.sZ}, s{self.sW}, {GPW}")
        A(f"s_add_u32 s{self.sY}, s{self.sY}, s{self.sZ}")
        A(f"s_lshl_b32 s{self.sX}, s{self.sBH}, 12")
        A(f"s_lshl_b32 s{self.sY}, s{self.sY}, 8")
        A(f"s_add_u32 s{self.sX}, s{self.sX}, s{self.sY}")
        self.srd(64, 10, 8*16*16*128*2)
        self.srd(68, 12, 8*16*16*128*2)
        KSZ = 52
        for gi in range(GPW):
            for i in range(4):
                r = KSZ + gi*16 + 2*i
                A(f"buffer_load_dwordx2 v[{r}:{r+1}], v{T+5}, s[64:67], s{self.sX} offen offset:{gi*256+64*i}")
            for i in range(4):
                r = KSZ + gi*16 + 8 + 2*i
                A(f"buffer_load_dwordx2 v[{r}:{r+1}], v{T+4}, s[68:71], s{self.sX} offen offset:{gi*256+64*i}")
        self.set_step_offsets()
        for a in range(4): self.ld_k(a)
        self.ld_sz()
        self.ld_v(0); self.ld_v(1)
        A(f"s_waitcnt vmcnt({34 + GPW*8})")
        QF = 36
        for k in range(8):
            A(f"v_lshlrev_b32 v{QF+2*k}, 16, v{16+k}")
            A(f"v_and_b32 v{QF+2*k+1}, 0xffff0000, v{16+k}")
        A(f"s_mul_i32 s{self.sZ}, s{self.sW}, {GPW*5120}")
        A(f"v_add_u32 v{T+7}, s{self.sZ}, v{self.vLT}")
        for gi in range(GPW):
            A(f"s_waitcnt vmcnt({34 + (GPW-1-gi)*8})")
            KS = KSZ + gi*16; KZ = KS + 8
            QB = self.vQB
            for k in range(8):
                t0, t1, t2, t3 = T, T+1, T+2, T+3
                A(f"v_lshlrev_b32 v{t0}, 16, v{KS+k}")
                A(f"v_and_b32 v{t1}, 0xffff0000, v{KS+k}")
                A(f"v_mul_f32 v{t0}, v{t0}, v{QF+2*k}")
                A(f"v_mul_f32 v{t1}, v{t1}, v{QF+2*k+1}")
                A(f"v_cvt_pk_bf16_f32 v{QB+k}, v{t0}, v{t1}")
                A(f"v_lshlrev_b32 v{t2}, 16, v{QB+k}")
                A(f"v_and_b32 v{t3}, 0xffff0000, v{QB+k}")
                A(f"v_sub_f32 v{t0}, v{t0}, v{t2}")
                A(f"v_sub_f32 v{t1}, v{t1}, v{t3}")
                A(f"v_cvt_pk_bf16_f32 v{QB+8+k}, v{t0}, v{t1}")
            for k in range(8):
                A(f"v_xor_b32 v{KZ+k}, 0x80008000, v{KZ+k}")
            A("s_nop 1")
            C0 = QB+16
            self.mfma(C0, KZ, QB, None)
            self.mfma(C0, KZ+4, QB+4, C0)
            self.mfma(C0, KZ, QB+8, C0)
            self.mfma(C0, KZ+4, QB+12, C0)
            for it in range(4):
                A(f"ds_write_b128 v{T+7}, v[{QB+it*4}:{QB+it*4+3}] offset:{gi*5120+it*1024}")
            A("s_nop 7")
            A(f"ds_write_b128 v{T+7}, v[{C0}:{C0+3}] offset:{gi*5120+4096}")
            if gi + 1 < GPW:
                A("s_waitcnt lgkmcnt(0)")
        for k in range(32): A(f"v_mov_b32 v{self.vO+k}, 0")
        for k in range(4): A(f"v_mov_b32 v{self.vCR+k}, 0")
        A(f"v_mov_b32 v{self.vM}, 0xff800000")
        A(f"v_mov_b32 v{self.vLs}, 0")
        A("s_waitcnt lgkmcnt(0)")
        A("s_barrier")
        self.ld_qb()
        if SPW > 1:
            A(f"s_mov_b32 s{self.sCNT}, {SPW-1}")
            self.label("L_loop")
            A(f"s_add_u32 s{self.sSTEP}, s{self.sSTEP}, {stride}")
            self.set_step_offsets()
            self.step(True)
            A(f"s_sub_u32 s{self.sCNT}, s{self.sCNT}, 1")
            A(f"s_cmp_lg_u32 s{self.sCNT}, 0")
            A("s_cbranch_scc1 L_loop")
        self.step(False)
        self.xlane("v_add_f32", self.vLs, T)
        A("s_nop 7")
        RR = self.vRK
        for h in range(2):
            for r in range(4):
                for c in range(4):
                    A(f"v_sub_f32 v{RR+h*16+r*4+c}, v{self.vO+(h*4+c)*4+r}, v{self.vCR+r}")
        A(f"v_and_b32 v{T}, 15, v{self.vLANE}")
        A(f"v_lshrrev_b32 v{T+1}, 4, v{self.vLANE}")
        A(f"v_mul_u32_u24 v{T+2}, 528, v{T}")
        A(f"v_lshl_add_u32 v{T+2}, v{T+1}, 6, v{T+2}")
        A(f"s_mul_i32 s{self.sX}, s{self.sW}, 4224")
        A(f"s_add_u32 s{self.sX}, s{self.sX}, {self.PART}")
        A(f"v_add_u32 v{T+2}, s{self.sX}, v{T+2}")
        A(f"s_lshl_b32 s{self.sX}, s{self.sW}, 6")
        A(f"s_add_u32 s{self.sX}, s{self.sX}, {self.STAT}")
        A(f"v_lshlrev_b32 v{T+3}, 3, v{T}")
        A(f"v_add_u32 v{T+3}, s{self.sX}, v{T+3}")
        A(f"s_mov_b64 exec, s[{self.sMASK}:{self.sMASK+1}]")
        for h in range(2):
            for r in range(4):
                rr = RR + h*16 + r*4
                A(f"ds_write_b128 v{T+2}, v[{rr}:{rr+3}] offset:{h*256+r*16}")
        A(f"ds_write_b64 v{T+3}, v[{self.vM}:{self.vM+1}]")
        A("s_mov_b64 exec, -1")
        A("s_waitcnt lgkmcnt(0)")
        A("s_barrier")
        A(f"s_cmp_lg_u32 s{self.sW}, 0")
        A("s_cbranch_scc1 L_end")
        A(f"v_lshrrev_b32 v{T}, 3, v{self.vLANE}")
        A(f"v_and_b32 v{T+1}, 7, v{self.vLANE}")
        A(f"v_mul_u32_u24 v{T+2}, 528, v{T}")
        A(f"v_lshl_add_u32 v{T+2}, v{T+1}, 6, v{T+2}")
        A(f"v_add_u32 v{T+2}, {self.PART}, v{T+2}")
        A(f"v_lshlrev_b32 v{T+3}, 3, v{T}")
        A(f"v_add_u32 v{T+3}, {self.STAT}, v{T+3}")
        ST = 16
        PO = 64
        for w in range(NW):
            A(f"ds_read_b64 v[{ST+2*w}:{ST+2*w+1}], v{T+3} offset:{w*64}")
        for w in range(NW):
            for k in range(4):
                r = PO + w*16 + k*4
                A(f"ds_read_b128 v[{r}:{r+3}], v{T+2} offset:{w*4224+k*16}")
        A(f"s_waitcnt lgkmcnt({min(15,NW*4)})")
        if NW*4 > 15:
            A("s_waitcnt lgkmcnt(0)")
        M = T+4; Lr = T+5
        A(f"v_mov_b32 v{M}, v{ST}")
        for w in range(1, NW):
            A(f"v_max_f32 v{M}, v{M}, v{ST+2*w}")
        for w in range(NW):
            A(f"v_sub_f32 v{ST+2*w}, v{ST+2*w}, v{M}")
        for w in range(NW):
            A(f"v_mul_f32 v{ST+2*w}, s{self.sC}, v{ST+2*w}")
        for w in range(NW):
            A(f"v_exp_f32 v{ST+2*w}, v{ST+2*w}")
        A("s_nop 0")
        A(f"v_mul_f32 v{Lr}, v{ST}, v{ST+1}")
        for w in range(1, NW):
            A(f"v_fmac_f32 v{Lr}, v{ST+2*w}, v{ST+2*w+1}")
        A("s_waitcnt lgkmcnt(0)")
        AC = 40
        for k in range(16):
            A(f"v_mul_f32 v{AC+k}, v{ST}, v{PO+k}")
        for w in range(1, NW):
            for k in range(16):
                A(f"v_fmac_f32 v{AC+k}, v{ST+2*w}, v{PO+w*16+k}")
        self.srd(self.sTMP, 22, 256*8192)
        A(f"s_lshl_b32 s{self.sX}, s2, 13")
        A(f"v_lshlrev_b32 v{T+6}, 3, v{self.vLANE}")
        for k in range(4):
            A(f"buffer_store_dwordx4 v[{AC+4*k}:{AC+4*k+3}], v{self.vLT}, s[{self.sTMP}:{self.sTMP+3}], s{self.sX} offen offset:{k*1024} sc0 sc1")
        A(f"v_add_u32 v{T+6}, 4096, v{T+6}")
        A(f"buffer_store_dwordx2 v[{M}:{M+1}], v{T+6}, s[{self.sTMP}:{self.sTMP+3}], s{self.sX} offen sc0 sc1")
        self.srd(64, 20, 256)
        A(f"s_lshr_b32 s{self.sY}, s{self.sBH}, 1")
        A(f"s_lshl_b32 s{self.sY}, s{self.sY}, 2")
        A(f"s_and_b32 s{self.sZ}, s{self.sBH}, 1")
        A(f"s_lshl_b32 s{self.sZ}, s{self.sZ}, 4")
        A(f"s_lshl_b32 s{self.sE}, 1, s{self.sZ}")
        A(f"v_mov_b32 v{T}, s{self.sE}")
        A(f"v_mov_b32 v{T+1}, 0")
        A("s_waitcnt vmcnt(0)")
        A("s_mov_b64 exec, 1")
        A(f"buffer_atomic_add v{T}, v{T+1}, s[64:67], s{self.sY} offen sc0 sc1")
        A("s_waitcnt vmcnt(0)")
        A("s_mov_b64 exec, -1")
        A(f"v_readfirstlane_b32 s{self.sE}, v{T}")
        A(f"s_lshr_b32 s{self.sE}, s{self.sE}, s{self.sZ}")
        A(f"s_and_b32 s{self.sE}, s{self.sE}, 0xffff")
        A(f"s_cmp_eq_u32 s{self.sE}, 0")
        A("s_cbranch_scc1 L_end")
        A(f"s_xor_b32 s{self.sX}, s2, 1")
        A(f"s_lshl_b32 s{self.sX}, s{self.sX}, 13")
        for k in range(4):
            A(f"buffer_load_dwordx4 v[{PO+4*k}:{PO+4*k+3}], v{self.vLT}, s[{self.sTMP}:{self.sTMP+3}], s{self.sX} offen offset:{k*1024} sc0 sc1")
        A(f"buffer_load_dwordx2 v[{ST}:{ST+1}], v{T+6}, s[{self.sTMP}:{self.sTMP+3}], s{self.sX} offen sc0 sc1")
        self.srd(68, 18, 8*32*4*128*2)
        A("s_waitcnt vmcnt(0)")
        A(f"v_max_f32 v{T}, v{M}, v{ST}")
        A(f"v_sub_f32 v{T+1}, v{M}, v{T}")
        A(f"v_sub_f32 v{T+2}, v{ST}, v{T}")
        A(f"v_mul_f32 v{T+1}, s{self.sC}, v{T+1}")
        A(f"v_mul_f32 v{T+2}, s{self.sC}, v{T+2}")
        A(f"v_exp_f32 v{T+1}, v{T+1}")
        A(f"v_exp_f32 v{T+2}, v{T+2}")
        A("s_nop 0")
        A(f"v_mul_f32 v{Lr}, v{T+1}, v{Lr}")
        A(f"v_fmac_f32 v{Lr}, v{T+2}, v{ST+1}")
        A(f"v_rcp_f32 v{Lr}, v{Lr}")
        A("s_nop 0")
        A(f"v_mul_f32 v{T+1}, v{T+1}, v{Lr}")
        A(f"v_mul_f32 v{T+2}, v{T+2}, v{Lr}")
        for k in range(16):
            A(f"v_mul_f32 v{AC+k}, v{T+1}, v{AC+k}")
        for k in range(16):
            A(f"v_fmac_f32 v{AC+k}, v{T+2}, v{PO+k}")
        for k in range(8):
            A(f"v_cvt_pk_bf16_f32 v{ST+k}, v{AC+2*k}, v{AC+2*k+1}")
        A(f"v_lshlrev_b32 v{T}, 5, v{self.vLANE}")
        A(f"s_lshl_b32 s{self.sX}, s{self.sBH}, 11")
        A(f"buffer_store_dwordx4 v[{ST}:{ST+3}], v{T}, s[68:71], s{self.sX} offen")
        A(f"buffer_store_dwordx4 v[{ST+4}:{ST+7}], v{T}, s[68:71], s{self.sX} offen offset:16")
        self.label("L_end")
        A("s_endpgm")
        L.append('.section .rodata,"a"')
        L.append(".p2align 6")
        L.append(f".amdhsa_kernel {KNAME}")
        L.append(f"  .amdhsa_next_free_vgpr {self.NV}")
        L.append("  .amdhsa_next_free_sgpr 80")
        L.append(f"  .amdhsa_accum_offset {(self.NV+3)//4*4}")
        L.append("  .amdhsa_group_segment_fixed_size 0")
        L.append("  .amdhsa_kernarg_size 80")
        L.append("  .amdhsa_user_sgpr_count 2")
        L.append("  .amdhsa_user_sgpr_kernarg_segment_ptr 1")
        L.append("  .amdhsa_system_sgpr_workgroup_id_x 1")
        L.append("  .amdhsa_float_denorm_mode_32 3")
        L.append(".end_amdhsa_kernel")
        return "\n".join(L) + "\n"

if __name__ == "__main__":
    out = sys.argv[1]
    NW = int(sys.argv[2]) if len(sys.argv) > 2 else 4
    order = sys.argv[3] if len(sys.argv) > 3 else "contig"
    open(out, "w").write(Gen(NW, order).build())
```

```python
import struct, sys, math

KNAME = "standalone__kv_cache_quant_int4_int2_kv_with_per_channel_or_per_token_scales__sampling_kernel"
HEADER = open("standalone__kv_cache_quant_int4_int2_kv_with_per_channel_or_per_token_scales__sampling.s.ref").read().split("; Override launch")[0]

def f32hex(x):
    return "0x%08x" % struct.unpack("<I", struct.pack("<f", x))[0]

C_SCALE = (128.0 ** -0.5) * 1.4426950408889634

class Gen:
    def __init__(self, NW=4, order="contig", ldflags="nt", stamp=False, kfl=None, vfl=None):
        self.NW = NW
        self.order = order
        self.ldflags = ldflags
        self.kfl = ldflags if kfl is None else kfl
        self.vfl = ldflags if vfl is None else vfl
        self.stamp = stamp
        self.L = []
        self.lbl = 0

    def A(self, s):
        self.L.append("  " + s)

    def label(self, s):
        self.L.append(s + ":")

    def newlabel(self, p="L"):
        self.lbl += 1
        return f"{p}_{self.lbl}"

    vTID = 0; vLANE = 1; vOK = 2; vOV = 3; vOS = 4; vLT = 5
    vT = 6
    vM = 14; vLs = 15
    vQB = 16
    vD = 36
    vS = 52
    vVF = 60
    vPB = 68
    vTP = 72
    vO = 80
    vCR = 112
    vVS = 116; vVZ = 120
    vRK = 124
    vRV = 188
    NV = 252
    sK = 24; sV = 28; sVS = 32; sVZ = 36
    sTMP = 40
    sMASK = 44
    sC = 46; sNC = 47
    sW = 48; sBH = 49; sHALF = 50
    sOFF = 51
    sOFS = 52
    sCNT = 53
    sSTEP = 54
    sX = 55; sY = 56; sZ = 57
    sE = 58
    sLQ = 60

    TBL = 0
    def lds_layout(self):
        self.NG = 8
        self.PART = self.NG * 5120
        self.STAT = self.PART + self.NW * 4224
        self.LDS = self.STAT + self.NW * 64

    def srd(self, d, ptr, nbytes):
        self.A(f"s_mov_b32 s{d}, s{ptr}")
        self.A(f"s_and_b32 s{d+1}, s{ptr+1}, 0xffff")
        self.A(f"s_mov_b32 s{d+2}, {nbytes}")
        self.A(f"s_mov_b32 s{d+3}, 0x20000")

    def ld_k(self, a):
        for i in range(4):
            r = self.vRK + a*16 + i*4
            self.A(f"buffer_load_dwordx4 v[{r}:{r+3}], v{self.vOK}, s[{self.sK}:{self.sK+3}], s{self.sOFF} offen offset:{a*1024+i*128} {self.kfl}")
    def ld_sz(self):
        self.A(f"buffer_load_dwordx4 v[{self.vVS}:{self.vVS+3}], v{self.vOS}, s[{self.sVS}:{self.sVS+3}], s{self.sOFS} offen")
        self.A(f"buffer_load_dwordx4 v[{self.vVZ}:{self.vVZ+3}], v{self.vOS}, s[{self.sVZ}:{self.sVZ+3}], s{self.sOFS} offen")
    def ld_v(self, h):
        for ab in range(8):
            r = self.vRV + h*32 + ab*4
            self.A(f"buffer_load_dwordx4 v[{r}:{r+3}], v{self.vOV}, s[{self.sV}:{self.sV+3}], s{self.sOFF} offen offset:{ab*512+h*256} {self.vfl}")
    def ld_qb(self):
        self.A(f"v_add_u32 v{self.vT}, s{self.sLQ}, v{self.vLT}")
        for it in range(5):
            r = self.vQB + it*4
            self.A(f"ds_read_b128 v[{r}:{r+3}], v{self.vT} offset:{it*1024}")

    def set_step_offsets(self):
        self.A(f"s_lshl_b32 s{self.sX}, s{self.sBH}, 20")
        self.A(f"s_lshl_b32 s{self.sOFF}, s{self.sSTEP}, 14")
        self.A(f"s_add_u32 s{self.sOFF}, s{self.sOFF}, s{self.sX}")
        self.A(f"s_lshr_b32 s{self.sOFS}, s{self.sOFF}, 8")
        self.A(f"s_lshr_b32 s{self.sX}, s{self.sSTEP}, 2")
        self.A(f"s_and_b32 s{self.sX}, s{self.sX}, {self.NG-1}")
        self.A(f"s_mul_i32 s{self.sLQ}, s{self.sX}, 5120")

    def xlane(self, op, x, t):
        self.A(f"v_mov_b32 v{t}, v{x}")
        self.A("s_nop 1")
        self.A(f"v_permlane16_swap_b32 v{t}, v{x}")
        self.A(f"{op} v{x}, v{x}, v{t}")
        self.A(f"v_mov_b32 v{t}, v{x}")
        self.A("s_nop 1")
        self.A(f"v_permlane32_swap_b32 v{t}, v{x}")
        self.A(f"{op} v{x}, v{x}, v{t}")

    def mfma(self, d, a, b, c):
        cs = "0" if c is None else f"v[{c}:{c+3}]"
        self.A(f"v_mfma_f32_16x16x32_bf16 v[{d}:{d+3}], v[{a}:{a+3}], v[{b}:{b+3}], {cs}")

    def dppadd(self, a):
        d = self.vD + a*4
        for b in range(2):
            self.A(f"v_add_f32_dpp v{self.vS+2*a+b}, v{d+2*b+1}, v{d+2*b} row_ror:8 row_mask:0xf bank_mask:0xf")

    def step(self, pf):
        QB = self.vQB
        Bhi0, Bhi1, Blo0, Blo1, C0 = QB, QB+4, QB+8, QB+12, QB+16
        q = [("K0",4),("K1",4),("K2",4),("K3",4),("SZ",2),("V0",8),("V1",8)]
        def wait_for(name):
            idx = [i for i,(n,_) in enumerate(q) if n == name][0]
            n_after = sum(c for _,c in q[idx+1:])
            del q[:idx+1]
            return n_after
        for a in range(4):
            n = wait_for(f"K{a}")
            if a == 0:
                self.A(f"s_waitcnt vmcnt({n}) lgkmcnt(0)")
            else:
                self.A(f"s_waitcnt vmcnt({n})")
            R = self.vRK + a*16
            for k in range(16):
                self.A(f"v_cvt_f32_i32 v{R+k}, v{R+k}")
            for mm in range(2):
                for k in range(4):
                    self.A(f"v_cvt_pk_bf16_f32 v{R+mm*8+k}, v{R+mm*8+2*k}, v{R+mm*8+2*k+1}")
            if a > 0:
                self.dppadd(a-1)
            else:
                self.A("s_nop 1")
            D = self.vD + a*4
            self.mfma(D, R, Bhi0, C0)
            self.mfma(D, R+8, Bhi1, D)
            self.mfma(D, R, Blo0, D)
            self.mfma(D, R+8, Blo1, D)
            if pf:
                self.ld_k(a); q.append((f"nK{a}",4))
        if pf:
            self.ld_qb()
        else:
            self.A("s_nop 7")
        self.dppadd(3)
        S = self.vS; T = self.vT
        t, u = T+1, T+2
        self.A(f"v_max3_f32 v{t}, v{S}, v{S+1}, v{S+2}")
        self.A(f"v_max3_f32 v{t}, v{t}, v{S+3}, v{S+4}")
        self.A(f"v_max3_f32 v{t}, v{t}, v{S+5}, v{S+6}")
        self.A(f"v_max_f32 v{t}, v{t}, v{S+7}")
        self.xlane("v_max_f32", t, u)
        skip = self.newlabel("Lskip")
        self.A(f"v_cmp_gt_f32 vcc, v{t}, v{self.vM}")
        self.A(f"s_and_b64 s[{self.sE}:{self.sE+1}], vcc, s[{self.sMASK}:{self.sMASK+1}]")
        self.A(f"s_cbranch_scc0 {skip}")
        self.A(f"v_max_f32 v{t}, v{t}, v{self.vM}")
        self.A(f"v_sub_f32 v{u}, v{self.vM}, v{t}")
        self.A(f"v_mul_f32 v{u}, s{self.sC}, v{u}")
        self.A(f"v_exp_f32 v{u}, v{u}")
        self.A(f"v_mov_b32 v{self.vM}, v{t}")
        for k in range(32):
            self.A(f"v_mul_f32 v{self.vO+k}, v{u}, v{self.vO+k}")
        for k in range(4):
            self.A(f"v_mul_f32 v{self.vCR+k}, v{u}, v{self.vCR+k}")
        self.A(f"v_mul_f32 v{self.vLs}, v{u}, v{self.vLs}")
        self.label(skip)
        self.A(f"v_mul_f32 v{t}, s{self.sNC}, v{self.vM}")
        for j in range(8):
            self.A(f"v_fma_f32 v{S+j}, v{S+j}, s{self.sC}, v{t}")
        for j in range(8):
            self.A(f"v_exp_f32 v{S+j}, v{S+j}")
        n = wait_for("SZ")
        self.A(f"s_waitcnt vmcnt({n})")
        VF = self.vVF
        for k in range(4):
            self.A(f"v_lshlrev_b32 v{VF+2*k}, 16, v{self.vVS+k}")
            self.A(f"v_and_b32 v{VF+2*k+1}, 0xffff0000, v{self.vVS+k}")
        for j in range(8):
            self.A(f"v_add_f32 v{self.vLs}, v{self.vLs}, v{S+j}")
        for j in range(8):
            self.A(f"v_mul_f32 v{S+j}, v{S+j}, v{VF+j}")
        for a in range(4):
            self.A(f"v_cvt_pk_bf16_f32 v{self.vPB+a}, v{S+2*a}, v{S+2*a+1}")
        self.A("s_nop 1")
        self.mfma(self.vCR, self.vVZ, self.vPB, self.vCR)
        if pf:
            self.ld_sz(); q.append(("nSZ",2))
        TP = self.vTP
        for h in range(2):
            n = wait_for(f"V{h}")
            self.A(f"s_waitcnt vmcnt({n})")
            R = self.vRV + h*32
            for k in range(32):
                self.A(f"v_cvt_f32_i32 v{R+k}, v{R+k}")
            def pk(c):
                for a in range(4):
                    self.A(f"v_cvt_pk_bf16_f32 v{TP+(c&1)*4+a}, v{R+(2*a)*4+c}, v{R+(2*a+1)*4+c}")
            def mf(c):
                o = self.vO + (h*4+c)*4
                self.mfma(o, TP+(c&1)*4, self.vPB, o)
            pk(0); pk(1); mf(0); pk(2); mf(1); pk(3); mf(2); self.A("s_nop 0"); mf(3)
            if pf:
                self.ld_v(h); q.append((f"nV{h}",8))

    def build(self):
        NW = self.NW
        self.lds_layout()
        SPW = 32 // NW
        GPW = self.NG // NW
        A = self.A
        L = self.L
        L.append(HEADER.rstrip("\n"))
        L.append(f"; @launch grid=(256,1,1) block=({NW*64},1,1) lds={self.LDS}")
        L.append('.amdgcn_target "amdgcn-amd-amdhsa--gfx950"')
        L.append(".text")
        L.append(f".globl {KNAME}")
        L.append(".p2align 8")
        L.append(f".type {KNAME},@function")
        L.append(f"{KNAME}:")
        A("s_cmp_ge_u32 s2, 256")
        A("s_cbranch_scc1 L_end")
        A("s_load_dwordx16 s[4:19], s[0:1], 0")
        A("s_load_dwordx4 s[20:23], s[0:1], 64")
        if self.stamp:
            A("s_memrealtime s[62:63]")
        T = self.vT
        A(f"v_lshrrev_b32 v{T}, 6, v0")
        A(f"v_and_b32 v{self.vLANE}, 63, v0")
        A(f"s_lshr_b32 s{self.sBH}, s2, 1")
        A(f"v_readfirstlane_b32 s{self.sW}, v{T}")
        A(f"s_and_b32 s{self.sHALF}, s2, 1")
        n_, g_ = T+1, T+2
        A(f"v_and_b32 v{n_}, 15, v{self.vLANE}")
        A(f"v_lshrrev_b32 v{g_}, 4, v{self.vLANE}")
        A(f"v_lshrrev_b32 v{T+3}, 2, v{n_}")
        A(f"v_lshlrev_b32 v{self.vOK}, 12, v{T+3}")
        A(f"v_bfe_u32 v{T+3}, v{n_}, 1, 1")
        A(f"v_lshl_add_u32 v{self.vOK}, v{T+3}, 9, v{self.vOK}")
        A(f"v_and_b32 v{T+3}, 1, v{n_}")
        A(f"v_lshl_add_u32 v{self.vOK}, v{T+3}, 6, v{self.vOK}")
        A(f"v_lshl_add_u32 v{self.vOK}, v{g_}, 4, v{self.vOK}")
        A(f"v_lshlrev_b32 v{T+4}, 5, v{T+3}")
        A(f"v_lshl_add_u32 v{T+4}, v{g_}, 3, v{T+4}")
        A(f"v_lshrrev_b32 v{T+3}, 3, v{n_}")
        A(f"v_lshlrev_b32 v{T+5}, 5, v{T+3}")
        A(f"v_lshl_add_u32 v{T+5}, v{g_}, 3, v{T+5}")
        A(f"v_and_b32 v{T+3}, 7, v{n_}")
        A(f"v_lshl_add_u32 v{T+6}, v{T+3}, 8, v{T+5}")
        A(f"v_lshlrev_b32 v{self.vOV}, 12, v{g_}")
        A(f"v_lshl_add_u32 v{self.vOV}, v{n_}, 4, v{self.vOV}")
        A(f"v_lshlrev_b32 v{self.vOS}, 4, v{g_}")
        A(f"v_lshlrev_b32 v{self.vLT}, 4, v{self.vLANE}")
        A(f"s_mov_b32 s{self.sMASK}, 0x00ff00ff")
        A(f"s_mov_b32 s{self.sMASK+1}, 0x00ff00ff")
        A(f"s_mov_b32 s{self.sC}, {f32hex(C_SCALE)}")
        A(f"s_mov_b32 s{self.sNC}, {f32hex(-C_SCALE)}")
        A(f"s_lshl_b32 s{self.sSTEP}, s{self.sHALF}, 5")
        if self.order == "contig":
            A(f"s_mul_i32 s{self.sX}, s{self.sW}, {SPW}")
            A(f"s_add_u32 s{self.sSTEP}, s{self.sSTEP}, s{self.sX}")
            stride = 1
        else:
            A(f"s_add_u32 s{self.sSTEP}, s{self.sSTEP}, s{self.sW}")
            stride = NW
        A("s_waitcnt lgkmcnt(0)")
        self.srd(self.sK, 6, 0x8000000)
        self.srd(self.sV, 8, 0x8000000)
        self.srd(self.sVS, 14, 8*16*2048*2)
        self.srd(self.sVZ, 16, 8*16*2048*2)
        self.srd(self.sTMP, 4, 8*32*4*128*2)
        A(f"s_lshl_b32 s{self.sX}, s{self.sBH}, 11")
        for i in range(4):
            A(f"buffer_load_dwordx2 v[{16+2*i}:{17+2*i}], v{T+6}, s[{self.sTMP}:{self.sTMP+3}], s{self.sX} offen offset:{64*i}")
        A(f"s_lshl_b32 s{self.sY}, s{self.sHALF}, 3")
        A(f"s_mul_i32 s{self.sZ}, s{self.sW}, {GPW}")
        A(f"s_add_u32 s{self.sY}, s{self.sY}, s{self.sZ}")
        A(f"s_lshl_b32 s{self.sX}, s{self.sBH}, 12")
        A(f"s_lshl_b32 s{self.sY}, s{self.sY}, 8")
        A(f"s_add_u32 s{self.sX}, s{self.sX}, s{self.sY}")
        self.srd(64, 10, 8*16*16*128*2)
        self.srd(68, 12, 8*16*16*128*2)
        KSZ = 52
        for gi in range(GPW):
            for i in range(4):
                r = KSZ + gi*16 + 2*i
                A(f"buffer_load_dwordx2 v[{r}:{r+1}], v{T+5}, s[64:67], s{self.sX} offen offset:{gi*256+64*i}")
            for i in range(4):
                r = KSZ + gi*16 + 8 + 2*i
                A(f"buffer_load_dwordx2 v[{r}:{r+1}], v{T+4}, s[68:71], s{self.sX} offen offset:{gi*256+64*i}")
        self.set_step_offsets()
        for a in range(4): self.ld_k(a)
        self.ld_sz()
        self.ld_v(0); self.ld_v(1)
        A(f"s_waitcnt vmcnt({34 + GPW*8})")
        QF = 36
        for k in range(8):
            A(f"v_lshlrev_b32 v{QF+2*k}, 16, v{16+k}")
            A(f"v_and_b32 v{QF+2*k+1}, 0xffff0000, v{16+k}")
        A(f"s_mul_i32 s{self.sZ}, s{self.sW}, {GPW*5120}")
        A(f"v_add_u32 v{T+7}, s{self.sZ}, v{self.vLT}")
        for gi in range(GPW):
            A(f"s_waitcnt vmcnt({34 + (GPW-1-gi)*8})")
            KS = KSZ + gi*16; KZ = KS + 8
            QB = self.vQB
            for k in range(8):
                t0, t1, t2, t3 = T, T+1, T+2, T+3
                A(f"v_lshlrev_b32 v{t0}, 16, v{KS+k}")
                A(f"v_and_b32 v{t1}, 0xffff0000, v{KS+k}")
                A(f"v_mul_f32 v{t0}, v{t0}, v{QF+2*k}")
                A(f"v_mul_f32 v{t1}, v{t1}, v{QF+2*k+1}")
                A(f"v_cvt_pk_bf16_f32 v{QB+k}, v{t0}, v{t1}")
                A(f"v_lshlrev_b32 v{t2}, 16, v{QB+k}")
                A(f"v_and_b32 v{t3}, 0xffff0000, v{QB+k}")
                A(f"v_sub_f32 v{t0}, v{t0}, v{t2}")
                A(f"v_sub_f32 v{t1}, v{t1}, v{t3}")
                A(f"v_cvt_pk_bf16_f32 v{QB+8+k}, v{t0}, v{t1}")
            for k in range(8):
                A(f"v_xor_b32 v{KZ+k}, 0x80008000, v{KZ+k}")
            A("s_nop 1")
            C0 = QB+16
            self.mfma(C0, KZ, QB, None)
            self.mfma(C0, KZ+4, QB+4, C0)
            self.mfma(C0, KZ, QB+8, C0)
            self.mfma(C0, KZ+4, QB+12, C0)
            for it in range(4):
                A(f"ds_write_b128 v{T+7}, v[{QB+it*4}:{QB+it*4+3}] offset:{gi*5120+it*1024}")
            A("s_nop 7")
            A(f"ds_write_b128 v{T+7}, v[{C0}:{C0+3}] offset:{gi*5120+4096}")
            if gi + 1 < GPW:
                A("s_waitcnt lgkmcnt(0)")
        for k in range(32): A(f"v_mov_b32 v{self.vO+k}, 0")
        for k in range(4): A(f"v_mov_b32 v{self.vCR+k}, 0")
        A(f"v_mov_b32 v{self.vM}, 0xff800000")
        A(f"v_mov_b32 v{self.vLs}, 0")
        A("s_waitcnt lgkmcnt(0)")
        A("s_barrier")
        self.ld_qb()
        if SPW > 1:
            A(f"s_mov_b32 s{self.sCNT}, {SPW-1}")
            self.label("L_loop")
            A(f"s_add_u32 s{self.sSTEP}, s{self.sSTEP}, {stride}")
            self.set_step_offsets()
            self.step(True)
            A(f"s_sub_u32 s{self.sCNT}, s{self.sCNT}, 1")
            A(f"s_cmp_lg_u32 s{self.sCNT}, 0")
            A("s_cbranch_scc1 L_loop")
        self.step(False)
        self.xlane("v_add_f32", self.vLs, T)
        A("s_nop 7")
        RR = self.vRK
        for h in range(2):
            for r in range(4):
                for c in range(4):
                    A(f"v_sub_f32 v{RR+h*16+r*4+c}, v{self.vO+(h*4+c)*4+r}, v{self.vCR+r}")
        A(f"v_and_b32 v{T}, 15, v{self.vLANE}")
        A(f"v_lshrrev_b32 v{T+1}, 4, v{self.vLANE}")
        A(f"v_mul_u32_u24 v{T+2}, 528, v{T}")
        A(f"v_lshl_add_u32 v{T+2}, v{T+1}, 6, v{T+2}")
        A(f"s_mul_i32 s{self.sX}, s{self.sW}, 4224")
        A(f"s_add_u32 s{self.sX}, s{self.sX}, {self.PART}")
        A(f"v_add_u32 v{T+2}, s{self.sX}, v{T+2}")
        A(f"s_lshl_b32 s{self.sX}, s{self.sW}, 6")
        A(f"s_add_u32 s{self.sX}, s{self.sX}, {self.STAT}")
        A(f"v_lshlrev_b32 v{T+3}, 3, v{T}")
        A(f"v_add_u32 v{T+3}, s{self.sX}, v{T+3}")
        A(f"s_mov_b64 exec, s[{self.sMASK}:{self.sMASK+1}]")
        for h in range(2):
            for r in range(4):
                rr = RR + h*16 + r*4
                A(f"ds_write_b128 v{T+2}, v[{rr}:{rr+3}] offset:{h*256+r*16}")
        A(f"ds_write_b64 v{T+3}, v[{self.vM}:{self.vM+1}]")
        A("s_mov_b64 exec, -1")
        A("s_waitcnt lgkmcnt(0)")
        A("s_barrier")
        A(f"s_cmp_lg_u32 s{self.sW}, 0")
        A("s_cbranch_scc1 L_end")
        A(f"v_lshrrev_b32 v{T}, 3, v{self.vLANE}")
        A(f"v_and_b32 v{T+1}, 7, v{self.vLANE}")
        A(f"v_mul_u32_u24 v{T+2}, 528, v{T}")
        A(f"v_lshl_add_u32 v{T+2}, v{T+1}, 6, v{T+2}")
        A(f"v_add_u32 v{T+2}, {self.PART}, v{T+2}")
        A(f"v_lshlrev_b32 v{T+3}, 3, v{T}")
        A(f"v_add_u32 v{T+3}, {self.STAT}, v{T+3}")
        ST = 16
        PO = 64
        for w in range(NW):
            A(f"ds_read_b64 v[{ST+2*w}:{ST+2*w+1}], v{T+3} offset:{w*64}")
        for w in range(NW):
            for k in range(4):
                r = PO + w*16 + k*4
                A(f"ds_read_b128 v[{r}:{r+3}], v{T+2} offset:{w*4224+k*16}")
        A(f"s_waitcnt lgkmcnt({min(15,NW*4)})")
        if NW*4 > 15:
            A("s_waitcnt lgkmcnt(0)")
        M = T+4; Lr = T+5
        A(f"v_mov_b32 v{M}, v{ST}")
        for w in range(1, NW):
            A(f"v_max_f32 v{M}, v{M}, v{ST+2*w}")
        for w in range(NW):
            A(f"v_sub_f32 v{ST+2*w}, v{ST+2*w}, v{M}")
        for w in range(NW):
            A(f"v_mul_f32 v{ST+2*w}, s{self.sC}, v{ST+2*w}")
        for w in range(NW):
            A(f"v_exp_f32 v{ST+2*w}, v{ST+2*w}")
        A("s_nop 0")
        A(f"v_mul_f32 v{Lr}, v{ST}, v{ST+1}")
        for w in range(1, NW):
            A(f"v_fmac_f32 v{Lr}, v{ST+2*w}, v{ST+2*w+1}")
        A("s_waitcnt lgkmcnt(0)")
        AC = 40
        for k in range(16):
            A(f"v_mul_f32 v{AC+k}, v{ST}, v{PO+k}")
        for w in range(1, NW):
            for k in range(16):
                A(f"v_fmac_f32 v{AC+k}, v{ST+2*w}, v{PO+w*16+k}")
        self.srd(self.sTMP, 22, 256*8192)
        A(f"s_lshl_b32 s{self.sX}, s2, 13")
        A(f"v_lshlrev_b32 v{T+6}, 3, v{self.vLANE}")
        for k in range(4):
            A(f"buffer_store_dwordx4 v[{AC+4*k}:{AC+4*k+3}], v{self.vLT}, s[{self.sTMP}:{self.sTMP+3}], s{self.sX} offen offset:{k*1024} sc0 sc1")
        A(f"v_add_u32 v{T+6}, 4096, v{T+6}")
        A(f"buffer_store_dwordx2 v[{M}:{M+1}], v{T+6}, s[{self.sTMP}:{self.sTMP+3}], s{self.sX} offen sc0 sc1")
        self.srd(64, 20, 256)
        A(f"s_lshr_b32 s{self.sY}, s{self.sBH}, 1")
        A(f"s_lshl_b32 s{self.sY}, s{self.sY}, 2")
        A(f"s_and_b32 s{self.sZ}, s{self.sBH}, 1")
        A(f"s_lshl_b32 s{self.sZ}, s{self.sZ}, 4")
        A(f"s_lshl_b32 s{self.sE}, 1, s{self.sZ}")
        A(f"v_mov_b32 v{T}, s{self.sE}")
        A(f"v_mov_b32 v{T+1}, 0")
        A("s_waitcnt vmcnt(0)")
        A("s_mov_b64 exec, 1")
        A(f"buffer_atomic_add v{T}, v{T+1}, s[64:67], s{self.sY} offen sc0 sc1")
        A("s_waitcnt vmcnt(0)")
        A("s_mov_b64 exec, -1")
        A(f"v_readfirstlane_b32 s{self.sE}, v{T}")
        A(f"s_lshr_b32 s{self.sE}, s{self.sE}, s{self.sZ}")
        A(f"s_and_b32 s{self.sE}, s{self.sE}, 0xffff")
        A(f"s_cmp_eq_u32 s{self.sE}, 0")
        A("s_cbranch_scc1 L_end")
        A(f"s_xor_b32 s{self.sX}, s2, 1")
        A(f"s_lshl_b32 s{self.sX}, s{self.sX}, 13")
        for k in range(4):
            A(f"buffer_load_dwordx4 v[{PO+4*k}:{PO+4*k+3}], v{self.vLT}, s[{self.sTMP}:{self.sTMP+3}], s{self.sX} offen offset:{k*1024} sc0 sc1")
        A(f"buffer_load_dwordx2 v[{ST}:{ST+1}], v{T+6}, s[{self.sTMP}:{self.sTMP+3}], s{self.sX} offen sc0 sc1")
        self.srd(68, 18, 8*32*4*128*2)
        A("s_waitcnt vmcnt(0)")
        A(f"v_max_f32 v{T}, v{M}, v{ST}")
        A(f"v_sub_f32 v{T+1}, v{M}, v{T}")
        A(f"v_sub_f32 v{T+2}, v{ST}, v{T}")
        A(f"v_mul_f32 v{T+1}, s{self.sC}, v{T+1}")
        A(f"v_mul_f32 v{T+2}, s{self.sC}, v{T+2}")
        A(f"v_exp_f32 v{T+1}, v{T+1}")
        A(f"v_exp_f32 v{T+2}, v{T+2}")
        A("s_nop 0")
        A(f"v_mul_f32 v{Lr}, v{T+1}, v{Lr}")
        A(f"v_fmac_f32 v{Lr}, v{T+2}, v{ST+1}")
        A(f"v_rcp_f32 v{Lr}, v{Lr}")
        A("s_nop 0")
        A(f"v_mul_f32 v{T+1}, v{T+1}, v{Lr}")
        A(f"v_mul_f32 v{T+2}, v{T+2}, v{Lr}")
        for k in range(16):
            A(f"v_mul_f32 v{AC+k}, v{T+1}, v{AC+k}")
        for k in range(16):
            A(f"v_fmac_f32 v{AC+k}, v{T+2}, v{PO+k}")
        for k in range(8):
            A(f"v_cvt_pk_bf16_f32 v{ST+k}, v{AC+2*k}, v{AC+2*k+1}")
        A(f"v_lshlrev_b32 v{T}, 5, v{self.vLANE}")
        A(f"s_lshl_b32 s{self.sX}, s{self.sBH}, 11")
        A(f"buffer_store_dwordx4 v[{ST}:{ST+3}], v{T}, s[68:71], s{self.sX} offen")
        A(f"buffer_store_dwordx4 v[{ST+4}:{ST+7}], v{T}, s[68:71], s{self.sX} offen offset:16")
        self.label("L_end")
        A("s_endpgm")
        L.append('.section .rodata,"a"')
        L.append(".p2align 6")
        L.append(f".amdhsa_kernel {KNAME}")
        L.append(f"  .amdhsa_next_free_vgpr {self.NV}")
        L.append("  .amdhsa_next_free_sgpr 80")
        L.append(f"  .amdhsa_accum_offset {(self.NV+3)//4*4}")
        L.append("  .amdhsa_group_segment_fixed_size 0")
        L.append("  .amdhsa_kernarg_size 80")
        L.append("  .amdhsa_user_sgpr_count 2")
        L.append("  .amdhsa_user_sgpr_kernarg_segment_ptr 1")
        L.append("  .amdhsa_system_sgpr_workgroup_id_x 1")
        L.append("  .amdhsa_float_denorm_mode_32 3")
        L.append(".end_amdhsa_kernel")
        return "\n".join(L) + "\n"

if __name__ == "__main__":
    out = sys.argv[1]
    NW = int(sys.argv[2]) if len(sys.argv) > 2 else 4
    order = sys.argv[3] if len(sys.argv) > 3 else "contig"
    kfl = sys.argv[4].replace("_"," ").replace("def","") if len(sys.argv) > 4 else "nt"
    vfl = sys.argv[5].replace("_"," ").replace("def","") if len(sys.argv) > 5 else "nt"
    open(out, "w").write(Gen(NW, order, kfl=kfl, vfl=vfl).build())
```

```python
import struct, sys, math

KNAME = "standalone__kv_cache_quant_int4_int2_kv_with_per_channel_or_per_token_scales__sampling_kernel"
HEADER = open("standalone__kv_cache_quant_int4_int2_kv_with_per_channel_or_per_token_scales__sampling.s.ref").read().split("; Override launch")[0]

def f32hex(x):
    return "0x%08x" % struct.unpack("<I", struct.pack("<f", x))[0]

C_SCALE = (128.0 ** -0.5) * 1.4426950408889634

class Gen:
    def __init__(self, NW=4, order="contig", ldflags="nt", stamp=False, kfl=None, vfl=None, pace=0, earlybar=False, vpos="postbar"):
        self.NW = NW
        self.order = order
        self.ldflags = ldflags
        self.kfl = ldflags if kfl is None else kfl
        self.vfl = ldflags if vfl is None else vfl
        self.stamp = stamp
        self.pace = pace
        self.earlybar = earlybar
        self.vpos = vpos
        self.L = []
        self.lbl = 0

    def A(self, s):
        self.L.append("  " + s)

    def label(self, s):
        self.L.append(s + ":")

    def newlabel(self, p="L"):
        self.lbl += 1
        return f"{p}_{self.lbl}"

    vTID = 0; vLANE = 1; vOK = 2; vOV = 3; vOS = 4; vLT = 5
    vT = 6
    vM = 14; vLs = 15
    vQB = 16
    vD = 36
    vS = 52
    vVF = 60
    vPB = 68
    vTP = 72
    vO = 80
    vCR = 112
    vVS = 116; vVZ = 120
    vRK = 124
    vRV = 188
    NV = 252
    sK = 24; sV = 28; sVS = 32; sVZ = 36
    sTMP = 40
    sMASK = 44
    sC = 46; sNC = 47
    sW = 48; sBH = 49; sHALF = 50
    sOFF = 51
    sOFS = 52
    sCNT = 53
    sSTEP = 54
    sX = 55; sY = 56; sZ = 57
    sE = 58
    sLQ = 60

    TBL = 0
    def lds_layout(self):
        self.NG = 8
        self.PART = self.NG * 5120
        self.STAT = self.PART + self.NW * 4224
        self.LDS = self.STAT + self.NW * 64

    def st(self, k):
        if self.stamp:
            self.A(f"s_memrealtime s[{80+2*k}:{81+2*k}]")

    def st_dump(self, n):
        if not self.stamp: return
        A = self.A
        A("s_getreg_b32 s96, hwreg(HW_REG_XCC_ID)")
        A("s_waitcnt lgkmcnt(0)")
        self.srd(72, 22, 0x1000000)
        A(f"s_mul_i32 s97, s2, {self.NW}")
        A(f"s_add_u32 s97, s97, s{self.sW}")
        A("s_lshl_b32 s97, s97, 6")
        A("s_add_u32 s97, s97, 0x400000")
        for k in range(8):
            A(f"v_mov_b32 v{248+(k&3)}, s{80+2*k}" if k < n else (f"v_mov_b32 v{248+(k&3)}, s96" if k == 7 else f"v_mov_b32 v{248+(k&3)}, 0"))
            if k & 3 == 3:
                A("v_mov_b32 v247, 0")
                A("s_mov_b64 exec, 1")
                A(f"buffer_store_dwordx4 v[248:251], v247, s[72:75], s97 offen offset:{(k>>2)*16}")
                A("s_mov_b64 exec, -1")
                A("s_nop 1")

    def srd(self, d, ptr, nbytes):
        self.A(f"s_mov_b32 s{d}, s{ptr}")
        self.A(f"s_and_b32 s{d+1}, s{ptr+1}, 0xffff")
        self.A(f"s_mov_b32 s{d+2}, {nbytes}")
        self.A(f"s_mov_b32 s{d+3}, 0x20000")

    def ld_k(self, a):
        for i in range(4):
            r = self.vRK + a*16 + i*4
            self.A(f"buffer_load_dwordx4 v[{r}:{r+3}], v{self.vOK}, s[{self.sK}:{self.sK+3}], s{self.sOFF} offen offset:{a*1024+i*128} {self.kfl}")
    def ld_sz(self):
        self.A(f"buffer_load_dwordx4 v[{self.vVS}:{self.vVS+3}], v{self.vOS}, s[{self.sVS}:{self.sVS+3}], s{self.sOFS} offen")
        self.A(f"buffer_load_dwordx4 v[{self.vVZ}:{self.vVZ+3}], v{self.vOS}, s[{self.sVZ}:{self.sVZ+3}], s{self.sOFS} offen")
    def ld_v(self, h):
        for ab in range(8):
            r = self.vRV + h*32 + ab*4
            self.A(f"buffer_load_dwordx4 v[{r}:{r+3}], v{self.vOV}, s[{self.sV}:{self.sV+3}], s{self.sOFF} offen offset:{ab*512+h*256} {self.vfl}")
    def ld_qb(self):
        self.A(f"v_add_u32 v{self.vT}, s{self.sLQ}, v{self.vLT}")
        for it in range(5):
            r = self.vQB + it*4
            self.A(f"ds_read_b128 v[{r}:{r+3}], v{self.vT} offset:{it*1024}")

    def set_step_offsets(self):
        self.A(f"s_lshl_b32 s{self.sX}, s{self.sBH}, 20")
        self.A(f"s_lshl_b32 s{self.sOFF}, s{self.sSTEP}, 14")
        self.A(f"s_add_u32 s{self.sOFF}, s{self.sOFF}, s{self.sX}")
        self.A(f"s_lshr_b32 s{self.sOFS}, s{self.sOFF}, 8")
        self.A(f"s_lshr_b32 s{self.sX}, s{self.sSTEP}, 2")
        self.A(f"s_and_b32 s{self.sX}, s{self.sX}, {self.NG-1}")
        self.A(f"s_mul_i32 s{self.sLQ}, s{self.sX}, 5120")

    def xlane(self, op, x, t):
        self.A(f"v_mov_b32 v{t}, v{x}")
        self.A("s_nop 1")
        self.A(f"v_permlane16_swap_b32 v{t}, v{x}")
        self.A(f"{op} v{x}, v{x}, v{t}")
        self.A(f"v_mov_b32 v{t}, v{x}")
        self.A("s_nop 1")
        self.A(f"v_permlane32_swap_b32 v{t}, v{x}")
        self.A(f"{op} v{x}, v{x}, v{t}")

    def mfma(self, d, a, b, c):
        cs = "0" if c is None else f"v[{c}:{c+3}]"
        self.A(f"v_mfma_f32_16x16x32_bf16 v[{d}:{d+3}], v[{a}:{a+3}], v[{b}:{b+3}], {cs}")

    def dppadd(self, a):
        d = self.vD + a*4
        for b in range(2):
            self.A(f"v_add_f32_dpp v{self.vS+2*a+b}, v{d+2*b+1}, v{d+2*b} row_ror:8 row_mask:0xf bank_mask:0xf")

    def step(self, pf):
        QB = self.vQB
        Bhi0, Bhi1, Blo0, Blo1, C0 = QB, QB+4, QB+8, QB+12, QB+16
        q = [("K0",4),("K1",4),("K2",4),("K3",4),("SZ",2),("V0",8),("V1",8)]
        def wait_for(name):
            idx = [i for i,(n,_) in enumerate(q) if n == name][0]
            n_after = sum(c for _,c in q[idx+1:])
            del q[:idx+1]
            return n_after
        for a in range(4):
            n = wait_for(f"K{a}")
            if a == 0:
                self.A(f"s_waitcnt vmcnt({n}) lgkmcnt(0)")
            else:
                self.A(f"s_waitcnt vmcnt({n})")
            R = self.vRK + a*16
            for k in range(16):
                self.A(f"v_cvt_f32_i32 v{R+k}, v{R+k}")
            for mm in range(2):
                for k in range(4):
                    self.A(f"v_cvt_pk_bf16_f32 v{R+mm*8+k}, v{R+mm*8+2*k}, v{R+mm*8+2*k+1}")
            if a > 0:
                self.dppadd(a-1)
            else:
                self.A("s_nop 1")
            D = self.vD + a*4
            self.mfma(D, R, Bhi0, C0)
            self.mfma(D, R+8, Bhi1, D)
            self.mfma(D, R, Blo0, D)
            self.mfma(D, R+8, Blo1, D)
            if pf:
                self.ld_k(a); q.append((f"nK{a}",4))
        if pf:
            self.ld_qb()
        else:
            self.A("s_nop 7")
        self.dppadd(3)
        S = self.vS; T = self.vT
        t, u = T+1, T+2
        self.A(f"v_max3_f32 v{t}, v{S}, v{S+1}, v{S+2}")
        self.A(f"v_max3_f32 v{t}, v{t}, v{S+3}, v{S+4}")
        self.A(f"v_max3_f32 v{t}, v{t}, v{S+5}, v{S+6}")
        self.A(f"v_max_f32 v{t}, v{t}, v{S+7}")
        self.xlane("v_max_f32", t, u)
        skip = self.newlabel("Lskip")
        self.A(f"v_cmp_gt_f32 vcc, v{t}, v{self.vM}")
        self.A(f"s_and_b64 s[{self.sE}:{self.sE+1}], vcc, s[{self.sMASK}:{self.sMASK+1}]")
        self.A(f"s_cbranch_scc0 {skip}")
        self.A(f"v_max_f32 v{t}, v{t}, v{self.vM}")
        self.A(f"v_sub_f32 v{u}, v{self.vM}, v{t}")
        self.A(f"v_mul_f32 v{u}, s{self.sC}, v{u}")
        self.A(f"v_exp_f32 v{u}, v{u}")
        self.A(f"v_mov_b32 v{self.vM}, v{t}")
        for k in range(32):
            self.A(f"v_mul_f32 v{self.vO+k}, v{u}, v{self.vO+k}")
        for k in range(4):
            self.A(f"v_mul_f32 v{self.vCR+k}, v{u}, v{self.vCR+k}")
        self.A(f"v_mul_f32 v{self.vLs}, v{u}, v{self.vLs}")
        self.label(skip)
        self.A(f"v_mul_f32 v{t}, s{self.sNC}, v{self.vM}")
        for j in range(8):
            self.A(f"v_fma_f32 v{S+j}, v{S+j}, s{self.sC}, v{t}")
        for j in range(8):
            self.A(f"v_exp_f32 v{S+j}, v{S+j}")
        n = wait_for("SZ")
        self.A(f"s_waitcnt vmcnt({n})")
        VF = self.vVF
        for k in range(4):
            self.A(f"v_lshlrev_b32 v{VF+2*k}, 16, v{self.vVS+k}")
            self.A(f"v_and_b32 v{VF+2*k+1}, 0xffff0000, v{self.vVS+k}")
        for j in range(8):
            self.A(f"v_add_f32 v{self.vLs}, v{self.vLs}, v{S+j}")
        for j in range(8):
            self.A(f"v_mul_f32 v{S+j}, v{S+j}, v{VF+j}")
        for a in range(4):
            self.A(f"v_cvt_pk_bf16_f32 v{self.vPB+a}, v{S+2*a}, v{S+2*a+1}")
        self.A("s_nop 1")
        self.mfma(self.vCR, self.vVZ, self.vPB, self.vCR)
        if pf:
            self.ld_sz(); q.append(("nSZ",2))
        TP = self.vTP
        for h in range(2):
            n = wait_for(f"V{h}")
            self.A(f"s_waitcnt vmcnt({n})")
            R = self.vRV + h*32
            for k in range(32):
                self.A(f"v_cvt_f32_i32 v{R+k}, v{R+k}")
            def pk(c):
                for a in range(4):
                    self.A(f"v_cvt_pk_bf16_f32 v{TP+(c&1)*4+a}, v{R+(2*a)*4+c}, v{R+(2*a+1)*4+c}")
            def mf(c):
                o = self.vO + (h*4+c)*4
                self.mfma(o, TP+(c&1)*4, self.vPB, o)
            pk(0); pk(1); mf(0); pk(2); mf(1); pk(3); mf(2); self.A("s_nop 0"); mf(3)
            if pf:
                self.ld_v(h); q.append((f"nV{h}",8))

    def build(self):
        NW = self.NW
        self.lds_layout()
        SPW = 32 // NW
        GPW = self.NG // NW
        A = self.A
        L = self.L
        L.append(HEADER.rstrip("\n"))
        L.append(f"; @launch grid=(256,1,1) block=({NW*64},1,1) lds={self.LDS}")
        L.append('.amdgcn_target "amdgcn-amd-amdhsa--gfx950"')
        L.append(".text")
        L.append(f".globl {KNAME}")
        L.append(".p2align 8")
        L.append(f".type {KNAME},@function")
        L.append(f"{KNAME}:")
        A("s_cmp_ge_u32 s2, 256")
        A("s_cbranch_scc1 L_end")
        A("s_load_dwordx16 s[4:19], s[0:1], 0")
        A("s_load_dwordx4 s[20:23], s[0:1], 64")
        self.st(0)
        T = self.vT
        A(f"v_lshrrev_b32 v{T}, 6, v0")
        A(f"v_and_b32 v{self.vLANE}, 63, v0")
        A(f"s_lshr_b32 s{self.sBH}, s2, 1")
        A(f"v_readfirstlane_b32 s{self.sW}, v{T}")
        A(f"s_and_b32 s{self.sHALF}, s2, 1")
        n_, g_ = T+1, T+2
        A(f"v_and_b32 v{n_}, 15, v{self.vLANE}")
        A(f"v_lshrrev_b32 v{g_}, 4, v{self.vLANE}")
        A(f"v_lshrrev_b32 v{T+3}, 2, v{n_}")
        A(f"v_lshlrev_b32 v{self.vOK}, 12, v{T+3}")
        A(f"v_bfe_u32 v{T+3}, v{n_}, 1, 1")
        A(f"v_lshl_add_u32 v{self.vOK}, v{T+3}, 9, v{self.vOK}")
        A(f"v_and_b32 v{T+3}, 1, v{n_}")
        A(f"v_lshl_add_u32 v{self.vOK}, v{T+3}, 6, v{self.vOK}")
        A(f"v_lshl_add_u32 v{self.vOK}, v{g_}, 4, v{self.vOK}")
        A(f"v_lshlrev_b32 v{T+4}, 5, v{T+3}")
        A(f"v_lshl_add_u32 v{T+4}, v{g_}, 3, v{T+4}")
        A(f"v_lshrrev_b32 v{T+3}, 3, v{n_}")
        A(f"v_lshlrev_b32 v{T+5}, 5, v{T+3}")
        A(f"v_lshl_add_u32 v{T+5}, v{g_}, 3, v{T+5}")
        A(f"v_and_b32 v{T+3}, 7, v{n_}")
        A(f"v_lshl_add_u32 v{T+6}, v{T+3}, 8, v{T+5}")
        A(f"v_lshlrev_b32 v{self.vOV}, 12, v{g_}")
        A(f"v_lshl_add_u32 v{self.vOV}, v{n_}, 4, v{self.vOV}")
        A(f"v_lshlrev_b32 v{self.vOS}, 4, v{g_}")
        A(f"v_lshlrev_b32 v{self.vLT}, 4, v{self.vLANE}")
        A(f"s_mov_b32 s{self.sMASK}, 0x00ff00ff")
        A(f"s_mov_b32 s{self.sMASK+1}, 0x00ff00ff")
        A(f"s_mov_b32 s{self.sC}, {f32hex(C_SCALE)}")
        A(f"s_mov_b32 s{self.sNC}, {f32hex(-C_SCALE)}")
        A(f"s_lshl_b32 s{self.sSTEP}, s{self.sHALF}, 5")
        if self.order == "contig":
            A(f"s_mul_i32 s{self.sX}, s{self.sW}, {SPW}")
            A(f"s_add_u32 s{self.sSTEP}, s{self.sSTEP}, s{self.sX}")
            stride = 1
        else:
            A(f"s_add_u32 s{self.sSTEP}, s{self.sSTEP}, s{self.sW}")
            stride = NW
        A("s_waitcnt lgkmcnt(0)")
        if self.stamp == 1: self.st(1)
        self.srd(self.sK, 6, 0x8000000)
        self.srd(self.sV, 8, 0x8000000)
        self.srd(self.sVS, 14, 8*16*2048*2)
        self.srd(self.sVZ, 16, 8*16*2048*2)
        self.srd(self.sTMP, 4, 8*32*4*128*2)
        A(f"s_lshl_b32 s{self.sX}, s{self.sBH}, 11")
        for i in range(4):
            A(f"buffer_load_dwordx2 v[{16+2*i}:{17+2*i}], v{T+6}, s[{self.sTMP}:{self.sTMP+3}], s{self.sX} offen offset:{64*i}")
        A(f"s_lshl_b32 s{self.sY}, s{self.sHALF}, 3")
        A(f"s_mul_i32 s{self.sZ}, s{self.sW}, {GPW}")
        A(f"s_add_u32 s{self.sY}, s{self.sY}, s{self.sZ}")
        A(f"s_lshl_b32 s{self.sX}, s{self.sBH}, 12")
        A(f"s_lshl_b32 s{self.sY}, s{self.sY}, 8")
        A(f"s_add_u32 s{self.sX}, s{self.sX}, s{self.sY}")
        self.srd(64, 10, 8*16*16*128*2)
        self.srd(68, 12, 8*16*16*128*2)
        KSZ = 52
        for gi in range(GPW):
            for i in range(4):
                r = KSZ + gi*16 + 2*i
                A(f"buffer_load_dwordx2 v[{r}:{r+1}], v{T+5}, s[64:67], s{self.sX} offen offset:{gi*256+64*i}")
            for i in range(4):
                r = KSZ + gi*16 + 8 + 2*i
                A(f"buffer_load_dwordx2 v[{r}:{r+1}], v{T+4}, s[68:71], s{self.sX} offen offset:{gi*256+64*i}")
        if self.earlybar:
            A("s_barrier")
        self.set_step_offsets()
        for a in range(4): self.ld_k(a)
        pend = 16
        A(f"s_waitcnt vmcnt({pend + GPW*8})")
        if self.stamp == 2: self.st(1)
        QF = 36
        for k in range(8):
            A(f"v_lshlrev_b32 v{QF+2*k}, 16, v{16+k}")
            A(f"v_and_b32 v{QF+2*k+1}, 0xffff0000, v{16+k}")
        A(f"s_mul_i32 s{self.sZ}, s{self.sW}, {GPW*5120}")
        A(f"v_add_u32 v{T+7}, s{self.sZ}, v{self.vLT}")
        for gi in range(GPW):
            A(f"s_waitcnt vmcnt({pend + (GPW-1-gi)*8})")
            KS = KSZ + gi*16; KZ = KS + 8
            QB = self.vQB
            for k in range(8):
                t0, t1, t2, t3 = T, T+1, T+2, T+3
                A(f"v_lshlrev_b32 v{t0}, 16, v{KS+k}")
                A(f"v_and_b32 v{t1}, 0xffff0000, v{KS+k}")
                A(f"v_mul_f32 v{t0}, v{t0}, v{QF+2*k}")
                A(f"v_mul_f32 v{t1}, v{t1}, v{QF+2*k+1}")
                A(f"v_cvt_pk_bf16_f32 v{QB+k}, v{t0}, v{t1}")
                A(f"v_lshlrev_b32 v{t2}, 16, v{QB+k}")
                A(f"v_and_b32 v{t3}, 0xffff0000, v{QB+k}")
                A(f"v_sub_f32 v{t0}, v{t0}, v{t2}")
                A(f"v_sub_f32 v{t1}, v{t1}, v{t3}")
                A(f"v_cvt_pk_bf16_f32 v{QB+8+k}, v{t0}, v{t1}")
            for k in range(8):
                A(f"v_xor_b32 v{KZ+k}, 0x80008000, v{KZ+k}")
            A("s_nop 1")
            C0 = QB+16
            self.mfma(C0, KZ, QB, None)
            self.mfma(C0, KZ+4, QB+4, C0)
            self.mfma(C0, KZ, QB+8, C0)
            self.mfma(C0, KZ+4, QB+12, C0)
            for it in range(4):
                A(f"ds_write_b128 v{T+7}, v[{QB+it*4}:{QB+it*4+3}] offset:{gi*5120+it*1024}")
            A("s_nop 7")
            A(f"ds_write_b128 v{T+7}, v[{C0}:{C0+3}] offset:{gi*5120+4096}")
            if gi + 1 < GPW:
                A("s_waitcnt lgkmcnt(0)")
        if self.vpos == "prebar":
            self.ld_sz(); self.ld_v(0); self.ld_v(1)
        for k in range(32): A(f"v_mov_b32 v{self.vO+k}, 0")
        for k in range(4): A(f"v_mov_b32 v{self.vCR+k}, 0")
        A(f"v_mov_b32 v{self.vM}, 0xff800000")
        A(f"v_mov_b32 v{self.vLs}, 0")
        A("s_waitcnt lgkmcnt(0)")
        A("s_barrier")
        self.st(2)
        if self.vpos == "postbar":
            self.ld_qb()
            self.ld_sz(); self.ld_v(0); self.ld_v(1)
        if self.stamp == 3:
            A("s_waitcnt vmcnt(30)")
            self.st(1)
        if self.stamp == 4:
            A("s_waitcnt vmcnt(0)")
            self.st(1)
        if self.vpos != "postbar":
            self.ld_qb()
        if SPW > 1:
            A(f"s_mov_b32 s{self.sCNT}, {SPW-1}")
            if self.pace:
                A("s_mov_b32 s98, s80")
            self.label("L_loop")
            if self.pace:
                A(f"s_add_u32 s98, s98, {self.pace}")
                self.label("L_pace")
                A("s_memrealtime s[76:77]")
                A("s_waitcnt lgkmcnt(0)")
                A("s_sub_u32 s99, s76, s98")
                A("s_cmp_lt_i32 s99, 0")
                A("s_cbranch_scc0 L_pace_done")
                A("s_sleep 2")
                A("s_branch L_pace")
                self.label("L_pace_done")
            A(f"s_add_u32 s{self.sSTEP}, s{self.sSTEP}, {stride}")
            self.set_step_offsets()
            self.step(True)
            A(f"s_sub_u32 s{self.sCNT}, s{self.sCNT}, 1")
            A(f"s_cmp_lg_u32 s{self.sCNT}, 0")
            A("s_cbranch_scc1 L_loop")
        self.step(False)
        self.st(3)
        self.xlane("v_add_f32", self.vLs, T)
        A("s_nop 7")
        RR = self.vRK
        for h in range(2):
            for r in range(4):
                for c in range(4):
                    A(f"v_sub_f32 v{RR+h*16+r*4+c}, v{self.vO+(h*4+c)*4+r}, v{self.vCR+r}")
        A(f"v_and_b32 v{T}, 15, v{self.vLANE}")
        A(f"v_lshrrev_b32 v{T+1}, 4, v{self.vLANE}")
        A(f"v_mul_u32_u24 v{T+2}, 528, v{T}")
        A(f"v_lshl_add_u32 v{T+2}, v{T+1}, 6, v{T+2}")
        A(f"s_mul_i32 s{self.sX}, s{self.sW}, 4224")
        A(f"s_add_u32 s{self.sX}, s{self.sX}, {self.PART}")
        A(f"v_add_u32 v{T+2}, s{self.sX}, v{T+2}")
        A(f"s_lshl_b32 s{self.sX}, s{self.sW}, 6")
        A(f"s_add_u32 s{self.sX}, s{self.sX}, {self.STAT}")
        A(f"v_lshlrev_b32 v{T+3}, 3, v{T}")
        A(f"v_add_u32 v{T+3}, s{self.sX}, v{T+3}")
        A(f"s_mov_b64 exec, s[{self.sMASK}:{self.sMASK+1}]")
        for h in range(2):
            for r in range(4):
                rr = RR + h*16 + r*4
                A(f"ds_write_b128 v{T+2}, v[{rr}:{rr+3}] offset:{h*256+r*16}")
        A(f"ds_write_b64 v{T+3}, v[{self.vM}:{self.vM+1}]")
        A("s_mov_b64 exec, -1")
        A("s_waitcnt lgkmcnt(0)")
        A("s_barrier")
        self.st(4)
        A(f"s_cmp_lg_u32 s{self.sW}, 0")
        A("s_cbranch_scc1 L_dump5")
        A(f"v_lshrrev_b32 v{T}, 3, v{self.vLANE}")
        A(f"v_and_b32 v{T+1}, 7, v{self.vLANE}")
        A(f"v_mul_u32_u24 v{T+2}, 528, v{T}")
        A(f"v_lshl_add_u32 v{T+2}, v{T+1}, 6, v{T+2}")
        A(f"v_add_u32 v{T+2}, {self.PART}, v{T+2}")
        A(f"v_lshlrev_b32 v{T+3}, 3, v{T}")
        A(f"v_add_u32 v{T+3}, {self.STAT}, v{T+3}")
        ST = 16
        PO = 64
        for w in range(NW):
            A(f"ds_read_b64 v[{ST+2*w}:{ST+2*w+1}], v{T+3} offset:{w*64}")
        for w in range(NW):
            for k in range(4):
                r = PO + w*16 + k*4
                A(f"ds_read_b128 v[{r}:{r+3}], v{T+2} offset:{w*4224+k*16}")
        A(f"s_waitcnt lgkmcnt({min(15,NW*4)})")
        if NW*4 > 15:
            A("s_waitcnt lgkmcnt(0)")
        M = T+4; Lr = T+5
        A(f"v_mov_b32 v{M}, v{ST}")
        for w in range(1, NW):
            A(f"v_max_f32 v{M}, v{M}, v{ST+2*w}")
        for w in range(NW):
            A(f"v_sub_f32 v{ST+2*w}, v{ST+2*w}, v{M}")
        for w in range(NW):
            A(f"v_mul_f32 v{ST+2*w}, s{self.sC}, v{ST+2*w}")
        for w in range(NW):
            A(f"v_exp_f32 v{ST+2*w}, v{ST+2*w}")
        A("s_nop 0")
        A(f"v_mul_f32 v{Lr}, v{ST}, v{ST+1}")
        for w in range(1, NW):
            A(f"v_fmac_f32 v{Lr}, v{ST+2*w}, v{ST+2*w+1}")
        A("s_waitcnt lgkmcnt(0)")
        AC = 40
        for k in range(16):
            A(f"v_mul_f32 v{AC+k}, v{ST}, v{PO+k}")
        for w in range(1, NW):
            for k in range(16):
                A(f"v_fmac_f32 v{AC+k}, v{ST+2*w}, v{PO+w*16+k}")
        self.srd(self.sTMP, 22, 256*8192)
        A(f"s_lshl_b32 s{self.sX}, s2, 13")
        A(f"v_lshlrev_b32 v{T+6}, 3, v{self.vLANE}")
        for k in range(4):
            A(f"buffer_store_dwordx4 v[{AC+4*k}:{AC+4*k+3}], v{self.vLT}, s[{self.sTMP}:{self.sTMP+3}], s{self.sX} offen offset:{k*1024} sc0 sc1")
        A(f"v_add_u32 v{T+6}, 4096, v{T+6}")
        A(f"buffer_store_dwordx2 v[{M}:{M+1}], v{T+6}, s[{self.sTMP}:{self.sTMP+3}], s{self.sX} offen sc0 sc1")
        self.srd(64, 20, 256)
        A(f"s_lshr_b32 s{self.sY}, s{self.sBH}, 2")
        A(f"s_lshl_b32 s{self.sY}, s{self.sY}, 2")
        A(f"s_add_u32 s{self.sY}, s{self.sY}, 128")
        A(f"s_and_b32 s{self.sZ}, s{self.sBH}, 3")
        A(f"s_lshl_b32 s{self.sZ}, s{self.sZ}, 3")
        A(f"s_lshl_b32 s{self.sE}, 1, s{self.sZ}")
        A(f"v_mov_b32 v{T}, s{self.sE}")
        A(f"v_mov_b32 v{T+1}, 0")
        A("s_waitcnt vmcnt(0)")
        A("s_mov_b64 exec, 1")
        A(f"buffer_atomic_add v{T}, v{T+1}, s[64:67], s{self.sY} offen sc0 sc1")
        A("s_waitcnt vmcnt(0)")
        A("s_mov_b64 exec, -1")
        A(f"v_readfirstlane_b32 s{self.sE}, v{T}")
        A(f"s_lshr_b32 s{self.sE}, s{self.sE}, s{self.sZ}")
        A(f"s_and_b32 s{self.sE}, s{self.sE}, 0xff")
        self.st(5)
        A(f"s_cmp_eq_u32 s{self.sE}, 0")
        A("s_cbranch_scc1 L_dump6")
        A(f"s_xor_b32 s{self.sX}, s2, 1")
        A(f"s_lshl_b32 s{self.sX}, s{self.sX}, 13")
        for k in range(4):
            A(f"buffer_load_dwordx4 v[{PO+4*k}:{PO+4*k+3}], v{self.vLT}, s[{self.sTMP}:{self.sTMP+3}], s{self.sX} offen offset:{k*1024} sc0 sc1")
        A(f"buffer_load_dwordx2 v[{ST}:{ST+1}], v{T+6}, s[{self.sTMP}:{self.sTMP+3}], s{self.sX} offen sc0 sc1")
        self.srd(68, 18, 8*32*4*128*2)
        A("s_waitcnt vmcnt(0)")
        A(f"v_max_f32 v{T}, v{M}, v{ST}")
        A(f"v_sub_f32 v{T+1}, v{M}, v{T}")
        A(f"v_sub_f32 v{T+2}, v{ST}, v{T}")
        A(f"v_mul_f32 v{T+1}, s{self.sC}, v{T+1}")
        A(f"v_mul_f32 v{T+2}, s{self.sC}, v{T+2}")
        A(f"v_exp_f32 v{T+1}, v{T+1}")
        A(f"v_exp_f32 v{T+2}, v{T+2}")
        A("s_nop 0")
        A(f"v_mul_f32 v{Lr}, v{T+1}, v{Lr}")
        A(f"v_fmac_f32 v{Lr}, v{T+2}, v{ST+1}")
        A(f"v_rcp_f32 v{Lr}, v{Lr}")
        A("s_nop 0")
        A(f"v_mul_f32 v{T+1}, v{T+1}, v{Lr}")
        A(f"v_mul_f32 v{T+2}, v{T+2}, v{Lr}")
        for k in range(16):
            A(f"v_mul_f32 v{AC+k}, v{T+1}, v{AC+k}")
        for k in range(16):
            A(f"v_fmac_f32 v{AC+k}, v{T+2}, v{PO+k}")
        for k in range(8):
            A(f"v_cvt_pk_bf16_f32 v{ST+k}, v{AC+2*k}, v{AC+2*k+1}")
        A(f"v_lshlrev_b32 v{T}, 5, v{self.vLANE}")
        A(f"s_lshl_b32 s{self.sX}, s{self.sBH}, 11")
        A(f"buffer_store_dwordx4 v[{ST}:{ST+3}], v{T}, s[68:71], s{self.sX} offen")
        A(f"buffer_store_dwordx4 v[{ST+4}:{ST+7}], v{T}, s[68:71], s{self.sX} offen offset:16")
        if self.stamp == 9:
            A("s_waitcnt vmcnt(0)")
            self.st(6)
            A("s_waitcnt lgkmcnt(0)")
            A("v_mov_b32 v6, s92")
            A("s_not_b32 s93, s80")
            A("v_mov_b32 v7, s93")
            A("v_mov_b32 v8, 0")
            A("v_mov_b32 v9, s86")
            A("s_mov_b64 exec, 1")
            A("buffer_atomic_umax v6, v8, s[64:67], 0 offen sc1")
            A("buffer_atomic_umax v7, v8, s[64:67], 0 offen offset:4 sc1")
            A("buffer_atomic_umax v9, v8, s[64:67], 0 offen offset:8 sc1")
            self.label("L_dump5"); self.label("L_dump6")
        elif self.stamp:
            A("s_waitcnt vmcnt(0)")
            self.st(6)
            self.st_dump(7)
            A("s_endpgm")
            self.label("L_dump6")
            self.st_dump(6)
            A("s_endpgm")
            self.label("L_dump5")
            self.st_dump(5)
        else:
            self.label("L_dump5"); self.label("L_dump6")
        self.label("L_end")
        A("s_endpgm")
        L.append('.section .rodata,"a"')
        L.append(".p2align 6")
        L.append(f".amdhsa_kernel {KNAME}")
        L.append(f"  .amdhsa_next_free_vgpr {self.NV}")
        L.append("  .amdhsa_next_free_sgpr 100")
        L.append(f"  .amdhsa_accum_offset {(self.NV+3)//4*4}")
        L.append("  .amdhsa_group_segment_fixed_size 0")
        L.append("  .amdhsa_kernarg_size 80")
        L.append("  .amdhsa_user_sgpr_count 2")
        L.append("  .amdhsa_user_sgpr_kernarg_segment_ptr 1")
        L.append("  .amdhsa_system_sgpr_workgroup_id_x 1")
        L.append("  .amdhsa_float_denorm_mode_32 3")
        L.append(".end_amdhsa_kernel")
        return "\n".join(L) + "\n"

if __name__ == "__main__":
    out = sys.argv[1]
    NW = int(sys.argv[2]) if len(sys.argv) > 2 else 4
    order = sys.argv[3] if len(sys.argv) > 3 else "contig"
    kfl = sys.argv[4].replace("_"," ").replace("def","") if len(sys.argv) > 4 else "nt"
    vfl = sys.argv[5].replace("_"," ").replace("def","") if len(sys.argv) > 5 else "nt"
    stamp = int(sys.argv[6][5:] or 1) if len(sys.argv) > 6 and sys.argv[6].startswith("stamp") else 0
    pace = int(sys.argv[7]) if len(sys.argv) > 7 else 0
    eb = len(sys.argv) > 8 and sys.argv[8] == "eb"
    vpos = sys.argv[9] if len(sys.argv) > 9 else "postbar"
    open(out, "w").write(Gen(NW, order, kfl=kfl, vfl=vfl, stamp=stamp, pace=pace, earlybar=eb, vpos=vpos).build())
```

```python
import struct, sys, math

KNAME = "standalone__kv_cache_quant_int4_int2_kv_with_per_channel_or_per_token_scales__sampling_kernel"
HEADER = open("standalone__kv_cache_quant_int4_int2_kv_with_per_channel_or_per_token_scales__sampling.s.ref").read().split("; Override launch")[0]

def f32hex(x):
    return "0x%08x" % struct.unpack("<I", struct.pack("<f", x))[0]

C_SCALE = (128.0 ** -0.5) * 1.4426950408889634

class Gen:
    def __init__(self, NW=4, order="contig", ldflags="nt", stamp=False, kfl=None, vfl=None, pace=0, earlybar=False, vpos="postbar", poll=True):
        self.NW = NW
        self.order = order
        self.ldflags = ldflags
        self.kfl = ldflags if kfl is None else kfl
        self.vfl = ldflags if vfl is None else vfl
        self.stamp = stamp
        self.pace = pace
        self.earlybar = earlybar
        self.vpos = vpos
        self.poll = poll
        self.L = []
        self.lbl = 0

    def A(self, s):
        self.L.append("  " + s)

    def label(self, s):
        self.L.append(s + ":")

    def newlabel(self, p="L"):
        self.lbl += 1
        return f"{p}_{self.lbl}"

    vTID = 0; vLANE = 1; vOK = 2; vOV = 3; vOS = 4; vLT = 5
    vT = 6
    vM = 14; vLs = 15
    vQB = 16
    vD = 36
    vS = 52
    vVF = 60
    vPB = 68
    vTP = 72
    vO = 80
    vCR = 112
    vVS = 116; vVZ = 120
    vRK = 124
    vRV = 188
    NV = 252
    sK = 24; sV = 28; sVS = 32; sVZ = 36
    sTMP = 40
    sMASK = 44
    sC = 46; sNC = 47
    sW = 48; sBH = 49; sHALF = 50
    sOFF = 51
    sOFS = 52
    sCNT = 53
    sSTEP = 54
    sX = 55; sY = 56; sZ = 57
    sE = 58
    sLQ = 60

    TBL = 0
    def lds_layout(self):
        self.NG = 8
        self.PART = self.NG * 5120
        self.STAT = self.PART + (self.NW+1) * 4224
        self.CTL = self.STAT + (self.NW+1) * 64
        self.LDS = self.CTL + 64

    def st(self, k):
        if self.stamp:
            self.A(f"s_memrealtime s[{80+2*k}:{81+2*k}]")

    def st_dump(self, n):
        if not self.stamp: return
        A = self.A
        A("s_mov_b64 exec, -1")
        A("s_getreg_b32 s96, hwreg(HW_REG_XCC_ID)")
        A("s_waitcnt lgkmcnt(0)")
        self.srd(72, 22, 0x1000000)
        A(f"s_mul_i32 s97, s2, {self.NW}")
        A(f"s_add_u32 s97, s97, s{self.sW}")
        A("s_lshl_b32 s97, s97, 6")
        A("s_add_u32 s97, s97, 0x400000")
        for k in range(8):
            A(f"v_mov_b32 v{248+(k&3)}, s{80+2*k}" if k < n else (f"v_mov_b32 v{248+(k&3)}, s96" if k == 7 else f"v_mov_b32 v{248+(k&3)}, 0"))
            if k & 3 == 3:
                A("v_mov_b32 v247, 0")
                A("s_mov_b64 exec, 1")
                A(f"buffer_store_dwordx4 v[248:251], v247, s[72:75], s97 offen offset:{(k>>2)*16}")
                A("s_mov_b64 exec, -1")
                A("s_nop 1")

    def srd(self, d, ptr, nbytes):
        self.A(f"s_mov_b32 s{d}, s{ptr}")
        self.A(f"s_and_b32 s{d+1}, s{ptr+1}, 0xffff")
        self.A(f"s_mov_b32 s{d+2}, {nbytes}")
        self.A(f"s_mov_b32 s{d+3}, 0x20000")

    def ld_k(self, a):
        for i in range(4):
            r = self.vRK + a*16 + i*4
            self.A(f"buffer_load_dwordx4 v[{r}:{r+3}], v{self.vOK}, s[{self.sK}:{self.sK+3}], s{self.sOFF} offen offset:{a*1024+i*128} {self.kfl}")
    def ld_sz(self):
        self.A(f"buffer_load_dwordx4 v[{self.vVS}:{self.vVS+3}], v{self.vOS}, s[{self.sVS}:{self.sVS+3}], s{self.sOFS} offen")
        self.A(f"buffer_load_dwordx4 v[{self.vVZ}:{self.vVZ+3}], v{self.vOS}, s[{self.sVZ}:{self.sVZ+3}], s{self.sOFS} offen")
    def ld_v(self, h):
        for ab in range(8):
            r = self.vRV + h*32 + ab*4
            self.A(f"buffer_load_dwordx4 v[{r}:{r+3}], v{self.vOV}, s[{self.sV}:{self.sV+3}], s{self.sOFF} offen offset:{ab*512+h*256} {self.vfl}")
    def ld_qb(self):
        self.A(f"v_add_u32 v{self.vT}, s{self.sLQ}, v{self.vLT}")
        for it in range(5):
            r = self.vQB + it*4
            self.A(f"ds_read_b128 v[{r}:{r+3}], v{self.vT} offset:{it*1024}")

    def set_step_offsets(self):
        self.A(f"s_lshl_b32 s{self.sX}, s{self.sBH}, 20")
        self.A(f"s_lshl_b32 s{self.sOFF}, s{self.sSTEP}, 14")
        self.A(f"s_add_u32 s{self.sOFF}, s{self.sOFF}, s{self.sX}")
        self.A(f"s_lshr_b32 s{self.sOFS}, s{self.sOFF}, 8")
        self.A(f"s_lshr_b32 s{self.sX}, s{self.sSTEP}, {3 if self.order == 'pinter' else 2}")
        self.A(f"s_and_b32 s{self.sX}, s{self.sX}, {self.NG-1}")
        self.A(f"s_mul_i32 s{self.sLQ}, s{self.sX}, 5120")

    def xlane(self, op, x, t):
        self.A(f"v_mov_b32 v{t}, v{x}")
        self.A("s_nop 1")
        self.A(f"v_permlane16_swap_b32 v{t}, v{x}")
        self.A(f"{op} v{x}, v{x}, v{t}")
        self.A(f"v_mov_b32 v{t}, v{x}")
        self.A("s_nop 1")
        self.A(f"v_permlane32_swap_b32 v{t}, v{x}")
        self.A(f"{op} v{x}, v{x}, v{t}")

    def mfma(self, d, a, b, c):
        cs = "0" if c is None else f"v[{c}:{c+3}]"
        self.A(f"v_mfma_f32_16x16x32_bf16 v[{d}:{d+3}], v[{a}:{a+3}], v[{b}:{b+3}], {cs}")

    def dppadd(self, a):
        d = self.vD + a*4
        for b in range(2):
            self.A(f"v_add_f32_dpp v{self.vS+2*a+b}, v{d+2*b+1}, v{d+2*b} row_ror:8 row_mask:0xf bank_mask:0xf")

    def step(self, pf):
        QB = self.vQB
        Bhi0, Bhi1, Blo0, Blo1, C0 = QB, QB+4, QB+8, QB+12, QB+16
        q = [("K0",4),("K1",4),("K2",4),("K3",4),("SZ",2),("V0",8),("V1",8)]
        def wait_for(name):
            idx = [i for i,(n,_) in enumerate(q) if n == name][0]
            n_after = sum(c for _,c in q[idx+1:])
            del q[:idx+1]
            return n_after
        for a in range(4):
            n = wait_for(f"K{a}")
            if a == 0:
                self.A(f"s_waitcnt vmcnt({n}) lgkmcnt(0)")
            else:
                self.A(f"s_waitcnt vmcnt({n})")
            R = self.vRK + a*16
            for k in range(16):
                self.A(f"v_cvt_f32_i32 v{R+k}, v{R+k}")
            for mm in range(2):
                for k in range(4):
                    self.A(f"v_cvt_pk_bf16_f32 v{R+mm*8+k}, v{R+mm*8+2*k}, v{R+mm*8+2*k+1}")
            if a > 0:
                self.dppadd(a-1)
            else:
                self.A("s_nop 1")
            D = self.vD + a*4
            self.mfma(D, R, Bhi0, C0)
            self.mfma(D, R+8, Bhi1, D)
            self.mfma(D, R, Blo0, D)
            self.mfma(D, R+8, Blo1, D)
            if pf:
                self.ld_k(a); q.append((f"nK{a}",4))
        if pf:
            self.ld_qb()
        else:
            self.A("s_nop 7")
        self.dppadd(3)
        S = self.vS; T = self.vT
        t, u = T+1, T+2
        self.A(f"v_max3_f32 v{t}, v{S}, v{S+1}, v{S+2}")
        self.A(f"v_max3_f32 v{t}, v{t}, v{S+3}, v{S+4}")
        self.A(f"v_max3_f32 v{t}, v{t}, v{S+5}, v{S+6}")
        self.A(f"v_max_f32 v{t}, v{t}, v{S+7}")
        self.xlane("v_max_f32", t, u)
        skip = self.newlabel("Lskip")
        self.A(f"v_cmp_gt_f32 vcc, v{t}, v{self.vM}")
        self.A(f"s_and_b64 s[{self.sE}:{self.sE+1}], vcc, s[{self.sMASK}:{self.sMASK+1}]")
        self.A(f"s_cbranch_scc0 {skip}")
        self.A(f"v_max_f32 v{t}, v{t}, v{self.vM}")
        self.A(f"v_sub_f32 v{u}, v{self.vM}, v{t}")
        self.A(f"v_mul_f32 v{u}, s{self.sC}, v{u}")
        self.A(f"v_exp_f32 v{u}, v{u}")
        self.A(f"v_mov_b32 v{self.vM}, v{t}")
        for k in range(32):
            self.A(f"v_mul_f32 v{self.vO+k}, v{u}, v{self.vO+k}")
        for k in range(4):
            self.A(f"v_mul_f32 v{self.vCR+k}, v{u}, v{self.vCR+k}")
        self.A(f"v_mul_f32 v{self.vLs}, v{u}, v{self.vLs}")
        self.label(skip)
        self.A(f"v_mul_f32 v{t}, s{self.sNC}, v{self.vM}")
        for j in range(8):
            self.A(f"v_fma_f32 v{S+j}, v{S+j}, s{self.sC}, v{t}")
        for j in range(8):
            self.A(f"v_exp_f32 v{S+j}, v{S+j}")
        n = wait_for("SZ")
        self.A(f"s_waitcnt vmcnt({n})")
        VF = self.vVF
        for k in range(4):
            self.A(f"v_lshlrev_b32 v{VF+2*k}, 16, v{self.vVS+k}")
            self.A(f"v_and_b32 v{VF+2*k+1}, 0xffff0000, v{self.vVS+k}")
        for j in range(8):
            self.A(f"v_add_f32 v{self.vLs}, v{self.vLs}, v{S+j}")
        for j in range(8):
            self.A(f"v_mul_f32 v{S+j}, v{S+j}, v{VF+j}")
        for a in range(4):
            self.A(f"v_cvt_pk_bf16_f32 v{self.vPB+a}, v{S+2*a}, v{S+2*a+1}")
        self.A("s_nop 1")
        self.mfma(self.vCR, self.vVZ, self.vPB, self.vCR)
        if pf:
            self.ld_sz(); q.append(("nSZ",2))
        TP = self.vTP
        for h in range(2):
            n = wait_for(f"V{h}")
            self.A(f"s_waitcnt vmcnt({n})")
            R = self.vRV + h*32
            for k in range(32):
                self.A(f"v_cvt_f32_i32 v{R+k}, v{R+k}")
            def pk(c):
                for a in range(4):
                    self.A(f"v_cvt_pk_bf16_f32 v{TP+(c&1)*4+a}, v{R+(2*a)*4+c}, v{R+(2*a+1)*4+c}")
            def mf(c):
                o = self.vO + (h*4+c)*4
                self.mfma(o, TP+(c&1)*4, self.vPB, o)
            pk(0); pk(1); mf(0); pk(2); mf(1); pk(3); mf(2); self.A("s_nop 0"); mf(3)
            if pf:
                self.ld_v(h); q.append((f"nV{h}",8))

    def combine(self, n, AC, ST, PO, M, Lr):
        A = self.A; T = self.vT
        for w in range(n):
            A(f"ds_read_b64 v[{ST+2*w}:{ST+2*w+1}], v{T+3} offset:{w*64}")
        for w in range(n):
            for k in range(4):
                r = PO + w*16 + k*4
                A(f"ds_read_b128 v[{r}:{r+3}], v{T+2} offset:{w*4224+k*16}")
        A(f"s_waitcnt lgkmcnt({min(15,n*4)})")
        if n*4 > 15:
            A(f"s_waitcnt lgkmcnt(15)")
        A(f"v_mov_b32 v{M}, v{ST}")
        for w in range(1, n):
            A(f"v_max_f32 v{M}, v{M}, v{ST+2*w}")
        for w in range(n):
            A(f"v_sub_f32 v{ST+2*w}, v{ST+2*w}, v{M}")
        for w in range(n):
            A(f"v_mul_f32 v{ST+2*w}, s{self.sC}, v{ST+2*w}")
        for w in range(n):
            A(f"v_exp_f32 v{ST+2*w}, v{ST+2*w}")
        A("s_nop 0")
        A(f"v_mul_f32 v{Lr}, v{ST}, v{ST+1}")
        for w in range(1, n):
            A(f"v_fmac_f32 v{Lr}, v{ST+2*w}, v{ST+2*w+1}")

    def combine2(self, n, AC, ST, PO):
        A = self.A
        A("s_waitcnt lgkmcnt(0)")
        for k in range(16):
            A(f"v_mul_f32 v{AC+k}, v{ST}, v{PO+k}")
        for w in range(1, n):
            for k in range(16):
                A(f"v_fmac_f32 v{AC+k}, v{ST+2*w}, v{PO+w*16+k}")

    def store_out(self, AC, ST):
        A = self.A; T = self.vT
        for k in range(8):
            A(f"v_cvt_pk_bf16_f32 v{ST+k}, v{AC+2*k}, v{AC+2*k+1}")
        A(f"v_lshlrev_b32 v{T}, 5, v{self.vLANE}")
        A(f"s_lshl_b32 s{self.sX}, s{self.sBH}, 11")
        A(f"buffer_store_dwordx4 v[{ST}:{ST+3}], v{T}, s[68:71], s{self.sX} offen")
        A(f"buffer_store_dwordx4 v[{ST+4}:{ST+7}], v{T}, s[68:71], s{self.sX} offen offset:16")

    def endgame(self):
        A = self.A; T = self.vT; NW = self.NW
        ST = 16; PO = 64; AC = 40; M = T+4; Lr = T+5
        sFO, sMY, sPB = self.sY, self.sZ, self.sCNT
        A(f"v_mov_b32 v{T}, {self.CTL}")
        A(f"v_mov_b32 v{T+1}, 1")
        A("s_waitcnt lgkmcnt(0)")
        A("s_mov_b64 exec, 1")
        A(f"ds_add_rtn_u32 v{T+1}, v{T}, v{T+1}")
        A("s_mov_b64 exec, -1")
        self.srd(self.sTMP, 22, 256*8192)
        self.srd(64, 20, 256)
        self.srd(68, 18, 8*32*4*128*2)
        A(f"s_lshr_b32 s{sFO}, s{self.sBH}, 2")
        A(f"s_lshl_b32 s{sFO}, s{sFO}, 2")
        A(f"s_add_u32 s{sFO}, s{sFO}, 128")
        A(f"s_and_b32 s{self.sE}, s{self.sBH}, 3")
        A(f"s_lshl_b32 s{self.sE}, s{self.sE}, 3")
        A(f"s_add_u32 s{self.sE+1}, s{self.sE}, s{self.sHALF}")
        A(f"s_lshl_b32 s{sMY}, 1, s{self.sE+1}")
        A(f"s_xor_b32 s{self.sE+1}, s{self.sE+1}, 1")
        A(f"s_lshl_b32 s{sPB}, 1, s{self.sE+1}")
        A(f"v_lshrrev_b32 v{T+4}, 3, v{self.vLANE}")
        A(f"v_and_b32 v{T+5}, 7, v{self.vLANE}")
        A(f"v_mul_u32_u24 v{T+2}, 528, v{T+4}")
        A(f"v_lshl_add_u32 v{T+2}, v{T+5}, 6, v{T+2}")
        A(f"v_add_u32 v{T+2}, {self.PART}, v{T+2}")
        A(f"v_lshlrev_b32 v{T+3}, 3, v{T+4}")
        A(f"v_add_u32 v{T+3}, {self.STAT}, v{T+3}")
        A(f"v_lshlrev_b32 v{T+6}, 3, v{self.vLANE}")
        A(f"v_add_u32 v{T+6}, 4096, v{T+6}")
        A(f"v_mov_b32 v{T+7}, 0")
        A(f"s_xor_b32 s{self.sOFF}, s2, 1")
        A(f"s_lshl_b32 s{self.sOFF}, s{self.sOFF}, 13")
        A(f"s_lshl_b32 s{self.sOFS}, s2, 13")
        A("s_waitcnt lgkmcnt(0)")
        A(f"v_readfirstlane_b32 s{self.sX}, v{T+1}")
        self.st(4)
        A(f"s_cmp_eq_u32 s{self.sX}, {NW-1}")
        A("s_cbranch_scc1 L_last_arriver")
        if not self.poll:
            A("s_branch L_dump5")
        if self.poll == "loop":
            A(f"s_cmp_lg_u32 s{self.sX}, 0")
            A("s_cbranch_scc1 L_dump5")
            self.label("L_poll")
            A(f"buffer_load_dword v{ST}, v{T+7}, s[64:67], s{sFO} offen sc0 sc1")
            A(f"ds_read_b32 v{ST+1}, v{T}")
            A("s_waitcnt vmcnt(0) lgkmcnt(0)")
            A(f"v_readfirstlane_b32 s{self.sE}, v{ST}")
            A(f"v_readfirstlane_b32 s{self.sE+1}, v{ST+1}")
            A(f"s_and_b32 s{self.sE}, s{self.sE}, s{sPB}")
            A("s_cbranch_scc1 L_fetch")
            A(f"s_cmp_lt_u32 s{self.sE+1}, {NW}")
            A("s_cbranch_scc1 L_poll")
            A("s_branch L_dump5")
        else:
            if self.poll == "first":
                A(f"s_cmp_lg_u32 s{self.sX}, 0")
                A("s_cbranch_scc1 L_dump5")
            A("s_mov_b64 exec, 1")
            A(f"buffer_load_dword v{ST}, v{T+7}, s[64:67], s{sFO} offen sc0 sc1")
            A(f"v_mov_b32 v{ST+1}, 1")
            A("s_waitcnt vmcnt(0)")
            A(f"v_readfirstlane_b32 s{self.sE}, v{ST}")
            A(f"s_and_b32 s{self.sE}, s{self.sE}, s{sPB}")
            A("s_cbranch_scc0 L_dump5")
            A(f"ds_add_rtn_u32 v{ST+1}, v{T}, v{ST+1} offset:8")
            A("s_waitcnt lgkmcnt(0)")
            A(f"v_readfirstlane_b32 s{self.sE}, v{ST+1}")
            A("s_mov_b64 exec, -1")
            A(f"s_cmp_lg_u32 s{self.sE}, 0")
            A("s_cbranch_scc1 L_dump5")
        self.label("L_fetch")
        for k in range(4):
            A(f"buffer_load_dwordx4 v[{PO+4*k}:{PO+4*k+3}], v{self.vLT}, s[{self.sTMP}:{self.sTMP+3}], s{self.sOFF} offen offset:{k*1024} sc0 sc1")
        A(f"buffer_load_dwordx2 v[{ST}:{ST+1}], v{T+6}, s[{self.sTMP}:{self.sTMP+3}], s{self.sOFF} offen sc0 sc1")
        A("s_waitcnt vmcnt(0)")
        for k in range(4):
            A(f"ds_write_b128 v{T+2}, v[{PO+4*k}:{PO+4*k+3}] offset:{NW*4224+k*16}")
        A(f"ds_write_b64 v{T+3}, v[{ST}:{ST+1}] offset:{NW*64}")
        A(f"v_mov_b32 v{T+1}, 1")
        A("s_waitcnt lgkmcnt(0)")
        A(f"ds_write_b32 v{T}, v{T+1} offset:4")
        A("s_branch L_dump5")
        self.label("L_last_arriver")
        A(f"ds_read_b32 v{T+1}, v{T} offset:4")
        A("s_waitcnt lgkmcnt(0)")
        A(f"v_readfirstlane_b32 s{self.sX}, v{T+1}")
        A(f"s_cmp_eq_u32 s{self.sX}, 0")
        A("s_cbranch_scc1 L_slow")
        self.combine(NW+1, AC, ST, PO, M, Lr)
        A(f"v_rcp_f32 v{Lr}, v{Lr}")
        A("s_nop 0")
        for w in range(NW+1):
            A(f"v_mul_f32 v{ST+2*w}, v{ST+2*w}, v{Lr}")
        self.combine2(NW+1, AC, ST, PO)
        self.store_out(AC, ST)
        A("s_branch L_fin")
        self.label("L_slow")
        A(f"buffer_load_dword v{T+1}, v{T+7}, s[64:67], s{sFO} offen sc0 sc1")
        self.combine(NW, AC, ST, PO, M, Lr)
        self.combine2(NW, AC, ST, PO)
        A("s_waitcnt vmcnt(0)")
        A(f"v_readfirstlane_b32 s{self.sE}, v{T+1}")
        A(f"s_and_b32 s{self.sE}, s{self.sE}, s{sPB}")
        A("s_cbranch_scc1 L_merge")
        for k in range(4):
            A(f"buffer_store_dwordx4 v[{AC+4*k}:{AC+4*k+3}], v{self.vLT}, s[{self.sTMP}:{self.sTMP+3}], s{self.sOFS} offen offset:{k*1024} sc0 sc1")
        A(f"buffer_store_dwordx2 v[{M}:{M+1}], v{T+6}, s[{self.sTMP}:{self.sTMP+3}], s{self.sOFS} offen sc0 sc1")
        A(f"v_mov_b32 v{T+1}, s{sMY}")
        A("s_waitcnt vmcnt(0)")
        A("s_mov_b64 exec, 1")
        A(f"buffer_atomic_or v{T+1}, v{T+7}, s[64:67], s{sFO} offen sc0 sc1")
        A("s_waitcnt vmcnt(0)")
        A("s_mov_b64 exec, -1")
        A(f"v_readfirstlane_b32 s{self.sE}, v{T+1}")
        self.st(5)
        A(f"s_and_b32 s{self.sE}, s{self.sE}, s{sPB}")
        A("s_cbranch_scc0 L_dump6")
        self.label("L_merge")
        for k in range(4):
            A(f"buffer_load_dwordx4 v[{PO+4*k}:{PO+4*k+3}], v{self.vLT}, s[{self.sTMP}:{self.sTMP+3}], s{self.sOFF} offen offset:{k*1024} sc0 sc1")
        A(f"buffer_load_dwordx2 v[{ST}:{ST+1}], v{T+6}, s[{self.sTMP}:{self.sTMP+3}], s{self.sOFF} offen sc0 sc1")
        A("s_waitcnt vmcnt(0)")
        A(f"v_max_f32 v{T}, v{M}, v{ST}")
        A(f"v_sub_f32 v{T+1}, v{M}, v{T}")
        A(f"v_sub_f32 v{T+2}, v{ST}, v{T}")
        A(f"v_mul_f32 v{T+1}, s{self.sC}, v{T+1}")
        A(f"v_mul_f32 v{T+2}, s{self.sC}, v{T+2}")
        A(f"v_exp_f32 v{T+1}, v{T+1}")
        A(f"v_exp_f32 v{T+2}, v{T+2}")
        A("s_nop 0")
        A(f"v_mul_f32 v{Lr}, v{T+1}, v{Lr}")
        A(f"v_fmac_f32 v{Lr}, v{T+2}, v{ST+1}")
        A(f"v_rcp_f32 v{Lr}, v{Lr}")
        A("s_nop 0")
        A(f"v_mul_f32 v{T+1}, v{T+1}, v{Lr}")
        A(f"v_mul_f32 v{T+2}, v{T+2}, v{Lr}")
        for k in range(16):
            A(f"v_mul_f32 v{AC+k}, v{T+1}, v{AC+k}")
        for k in range(16):
            A(f"v_fmac_f32 v{AC+k}, v{T+2}, v{PO+k}")
        self.store_out(AC, ST)
        self.label("L_fin")

    def build(self):
        NW = self.NW
        self.lds_layout()
        SPW = 32 // NW
        GPW = self.NG // NW
        A = self.A
        self.L.append(HEADER.rstrip("\n"))
        self.L.append(f"; @launch grid=(256,1,1) block=({NW*64},1,1) lds={self.LDS}")
        self.L.append('.amdgcn_target "amdgcn-amd-amdhsa--gfx950"')
        self.L.append(".text")
        self.L.append(f".globl {KNAME}")
        self.L.append(".p2align 8")
        self.L.append(f".type {KNAME},@function")
        self.L.append(f"{KNAME}:")
        A("s_cmp_ge_u32 s2, 256")
        A("s_cbranch_scc1 L_end")
        A("s_load_dwordx16 s[4:19], s[0:1], 0")
        A("s_load_dwordx4 s[20:23], s[0:1], 64")
        self.st(0)
        if self.stamp:
            for k in range(1,7): A(f"s_mov_b32 s{80+2*k}, 0")
        T = self.vT
        A(f"v_lshrrev_b32 v{T}, 6, v0")
        A(f"v_and_b32 v{self.vLANE}, 63, v0")
        A(f"s_lshr_b32 s{self.sBH}, s2, 1")
        A(f"v_readfirstlane_b32 s{self.sW}, v{T}")
        A(f"s_and_b32 s{self.sHALF}, s2, 1")
        n_, g_ = T+1, T+2
        A(f"v_and_b32 v{n_}, 15, v{self.vLANE}")
        A(f"v_lshrrev_b32 v{g_}, 4, v{self.vLANE}")
        A(f"v_lshrrev_b32 v{T+3}, 2, v{n_}")
        A(f"v_lshlrev_b32 v{self.vOK}, 12, v{T+3}")
        A(f"v_bfe_u32 v{T+3}, v{n_}, 1, 1")
        A(f"v_lshl_add_u32 v{self.vOK}, v{T+3}, 9, v{self.vOK}")
        A(f"v_and_b32 v{T+3}, 1, v{n_}")
        A(f"v_lshl_add_u32 v{self.vOK}, v{T+3}, 6, v{self.vOK}")
        A(f"v_lshl_add_u32 v{self.vOK}, v{g_}, 4, v{self.vOK}")
        A(f"v_lshlrev_b32 v{T+4}, 5, v{T+3}")
        A(f"v_lshl_add_u32 v{T+4}, v{g_}, 3, v{T+4}")
        A(f"v_lshrrev_b32 v{T+3}, 3, v{n_}")
        A(f"v_lshlrev_b32 v{T+5}, 5, v{T+3}")
        A(f"v_lshl_add_u32 v{T+5}, v{g_}, 3, v{T+5}")
        A(f"v_and_b32 v{T+3}, 7, v{n_}")
        A(f"v_lshl_add_u32 v{T+6}, v{T+3}, 8, v{T+5}")
        A(f"v_lshlrev_b32 v{self.vOV}, 12, v{g_}")
        A(f"v_lshl_add_u32 v{self.vOV}, v{n_}, 4, v{self.vOV}")
        A(f"v_lshlrev_b32 v{self.vOS}, 4, v{g_}")
        A(f"v_lshlrev_b32 v{self.vLT}, 4, v{self.vLANE}")
        A(f"s_mov_b32 s{self.sMASK}, 0x00ff00ff")
        A(f"s_mov_b32 s{self.sMASK+1}, 0x00ff00ff")
        A(f"s_mov_b32 s{self.sC}, {f32hex(C_SCALE)}")
        A(f"s_mov_b32 s{self.sNC}, {f32hex(-C_SCALE)}")
        A(f"s_lshl_b32 s{self.sSTEP}, s{self.sHALF}, 5")
        if self.order == "pinter":
            assert NW == 4
            A(f"s_lshl_b32 s{self.sSTEP}, s{self.sHALF}, 2")
            A(f"s_add_u32 s{self.sSTEP}, s{self.sSTEP}, s{self.sW}")
            stride = 8
        elif self.order == "contig":
            A(f"s_mul_i32 s{self.sX}, s{self.sW}, {SPW}")
            A(f"s_add_u32 s{self.sSTEP}, s{self.sSTEP}, s{self.sX}")
            stride = 1
        else:
            A(f"s_add_u32 s{self.sSTEP}, s{self.sSTEP}, s{self.sW}")
            stride = NW
        A("s_waitcnt lgkmcnt(0)")
        if self.stamp == 1: self.st(1)
        self.srd(self.sK, 6, 0x8000000)
        self.srd(self.sV, 8, 0x8000000)
        self.srd(self.sVS, 14, 8*16*2048*2)
        self.srd(self.sVZ, 16, 8*16*2048*2)
        self.srd(self.sTMP, 4, 8*32*4*128*2)
        A(f"s_lshl_b32 s{self.sX}, s{self.sBH}, 11")
        for i in range(4):
            A(f"buffer_load_dwordx2 v[{16+2*i}:{17+2*i}], v{T+6}, s[{self.sTMP}:{self.sTMP+3}], s{self.sX} offen offset:{64*i}")
        if self.order == "pinter":
            A(f"s_mul_i32 s{self.sY}, s{self.sW}, {2*GPW}")
            A(f"s_add_u32 s{self.sY}, s{self.sY}, s{self.sHALF}")
            GST = 512
        else:
            A(f"s_lshl_b32 s{self.sY}, s{self.sHALF}, 3")
            A(f"s_mul_i32 s{self.sZ}, s{self.sW}, {GPW}")
            A(f"s_add_u32 s{self.sY}, s{self.sY}, s{self.sZ}")
            GST = 256
        A(f"s_lshl_b32 s{self.sX}, s{self.sBH}, 12")
        A(f"s_lshl_b32 s{self.sY}, s{self.sY}, 8")
        A(f"s_add_u32 s{self.sX}, s{self.sX}, s{self.sY}")
        self.srd(64, 10, 8*16*16*128*2)
        self.srd(68, 12, 8*16*16*128*2)
        KSZ = 52
        for gi in range(GPW):
            for i in range(4):
                r = KSZ + gi*16 + 2*i
                A(f"buffer_load_dwordx2 v[{r}:{r+1}], v{T+5}, s[64:67], s{self.sX} offen offset:{gi*GST+64*i}")
            for i in range(4):
                r = KSZ + gi*16 + 8 + 2*i
                A(f"buffer_load_dwordx2 v[{r}:{r+1}], v{T+4}, s[68:71], s{self.sX} offen offset:{gi*GST+64*i}")
        if self.earlybar:
            A("s_barrier")
        self.set_step_offsets()
        for a in range(4): self.ld_k(a)
        pend = [16]
        defer = []
        if self.vpos.startswith("mix"):
            save = self.L; self.L = []
            self.ld_sz(); self.ld_v(0); self.ld_v(1)
            defer = self.L; self.L = save
        gap = int(self.vpos[3:] or 10) if self.vpos.startswith("mix") else 0
        cnt = [0]
        def B(x):
            A(x)
            cnt[0] += 1
            if defer and cnt[0] % gap == 0:
                self.L.append(defer.pop(0)); pend[0] += 1
        A(f"s_waitcnt vmcnt({pend[0] + GPW*8})")
        if self.stamp == 2: self.st(1)
        QF = 36
        for k in range(8):
            B(f"v_lshlrev_b32 v{QF+2*k}, 16, v{16+k}")
            B(f"v_and_b32 v{QF+2*k+1}, 0xffff0000, v{16+k}")
        A(f"s_mul_i32 s{self.sZ}, s{self.sW}, {GPW*5120}")
        A(f"v_add_u32 v{T+7}, s{self.sZ}, v{self.vLT}")
        for gi in range(GPW):
            A(f"s_waitcnt vmcnt({pend[0] + (GPW-1-gi)*8})")
            KS = KSZ + gi*16; KZ = KS + 8
            QB = self.vQB
            for k in range(8):
                t0, t1, t2, t3 = T, T+1, T+2, T+3
                B(f"v_lshlrev_b32 v{t0}, 16, v{KS+k}")
                B(f"v_and_b32 v{t1}, 0xffff0000, v{KS+k}")
                B(f"v_mul_f32 v{t0}, v{t0}, v{QF+2*k}")
                B(f"v_mul_f32 v{t1}, v{t1}, v{QF+2*k+1}")
                B(f"v_cvt_pk_bf16_f32 v{QB+k}, v{t0}, v{t1}")
                B(f"v_lshlrev_b32 v{t2}, 16, v{QB+k}")
                B(f"v_and_b32 v{t3}, 0xffff0000, v{QB+k}")
                B(f"v_sub_f32 v{t0}, v{t0}, v{t2}")
                B(f"v_sub_f32 v{t1}, v{t1}, v{t3}")
                B(f"v_cvt_pk_bf16_f32 v{QB+8+k}, v{t0}, v{t1}")
            for k in range(8):
                B(f"v_xor_b32 v{KZ+k}, 0x80008000, v{KZ+k}")
            A("s_nop 1")
            C0 = QB+16
            self.mfma(C0, KZ, QB, None)
            self.mfma(C0, KZ+4, QB+4, C0)
            self.mfma(C0, KZ, QB+8, C0)
            self.mfma(C0, KZ+4, QB+12, C0)
            for it in range(4):
                A(f"ds_write_b128 v{T+7}, v[{QB+it*4}:{QB+it*4+3}] offset:{gi*5120+it*1024}")
            A("s_nop 7")
            A(f"ds_write_b128 v{T+7}, v[{C0}:{C0+3}] offset:{gi*5120+4096}")
            if gi + 1 < GPW:
                A("s_waitcnt lgkmcnt(0)")
        self.defer_rest = defer
        if self.vpos == "prebar":
            self.ld_sz(); self.ld_v(0); self.ld_v(1)
        A(f"v_mov_b32 v{T}, {self.CTL}")
        A(f"v_mov_b32 v{T+2}, 0")
        A(f"v_mov_b32 v{T+3}, 0")
        A(f"ds_write_b64 v{T}, v[{T+2}:{T+3}]")
        A(f"ds_write_b64 v{T}, v[{T+2}:{T+3}] offset:8")
        for k in range(32): A(f"v_mov_b32 v{self.vO+k}, 0")
        for k in range(4): A(f"v_mov_b32 v{self.vCR+k}, 0")
        A(f"v_mov_b32 v{self.vM}, 0xff800000")
        A(f"v_mov_b32 v{self.vLs}, 0")
        A("s_waitcnt lgkmcnt(0)")
        A("s_barrier")
        self.st(2)
        if self.vpos == "postbar":
            self.ld_qb()
            self.ld_sz(); self.ld_v(0); self.ld_v(1)
        if self.vpos.startswith("mix"):
            self.L.extend(self.defer_rest)
        if self.stamp == 3:
            A("s_waitcnt vmcnt(30)")
            self.st(1)
        if self.stamp == 4:
            A("s_waitcnt vmcnt(0)")
            self.st(1)
        if self.vpos != "postbar":
            self.ld_qb()
        if SPW > 1:
            A(f"s_mov_b32 s{self.sCNT}, {SPW-1}")
            if self.pace:
                A("s_mov_b32 s98, s80")
            self.label("L_loop")
            if self.pace:
                A(f"s_add_u32 s98, s98, {self.pace}")
                self.label("L_pace")
                A("s_memrealtime s[76:77]")
                A("s_waitcnt lgkmcnt(0)")
                A("s_sub_u32 s99, s76, s98")
                A("s_cmp_lt_i32 s99, 0")
                A("s_cbranch_scc0 L_pace_done")
                A("s_sleep 2")
                A("s_branch L_pace")
                self.label("L_pace_done")
            A(f"s_add_u32 s{self.sSTEP}, s{self.sSTEP}, {stride}")
            self.set_step_offsets()
            self.step(True)
            A(f"s_sub_u32 s{self.sCNT}, s{self.sCNT}, 1")
            A(f"s_cmp_lg_u32 s{self.sCNT}, 0")
            A("s_cbranch_scc1 L_loop")
        self.step(False)
        self.st(3)
        self.xlane("v_add_f32", self.vLs, T)
        A("s_nop 7")
        RR = self.vRK
        for h in range(2):
            for r in range(4):
                for c in range(4):
                    A(f"v_sub_f32 v{RR+h*16+r*4+c}, v{self.vO+(h*4+c)*4+r}, v{self.vCR+r}")
        A(f"v_and_b32 v{T}, 15, v{self.vLANE}")
        A(f"v_lshrrev_b32 v{T+1}, 4, v{self.vLANE}")
        A(f"v_mul_u32_u24 v{T+2}, 528, v{T}")
        A(f"v_lshl_add_u32 v{T+2}, v{T+1}, 6, v{T+2}")
        A(f"s_mul_i32 s{self.sX}, s{self.sW}, 4224")
        A(f"s_add_u32 s{self.sX}, s{self.sX}, {self.PART}")
        A(f"v_add_u32 v{T+2}, s{self.sX}, v{T+2}")
        A(f"s_lshl_b32 s{self.sX}, s{self.sW}, 6")
        A(f"s_add_u32 s{self.sX}, s{self.sX}, {self.STAT}")
        A(f"v_lshlrev_b32 v{T+3}, 3, v{T}")
        A(f"v_add_u32 v{T+3}, s{self.sX}, v{T+3}")
        A(f"s_mov_b64 exec, s[{self.sMASK}:{self.sMASK+1}]")
        for h in range(2):
            for r in range(4):
                rr = RR + h*16 + r*4
                A(f"ds_write_b128 v{T+2}, v[{rr}:{rr+3}] offset:{h*256+r*16}")
        A(f"ds_write_b64 v{T+3}, v[{self.vM}:{self.vM+1}]")
        A("s_mov_b64 exec, -1")
        self.endgame()
        if self.stamp == 9:
            A("s_waitcnt vmcnt(0)")
            self.st(6)
            A("s_waitcnt lgkmcnt(0)")
            A("v_mov_b32 v6, s92")
            A("s_not_b32 s93, s80")
            A("v_mov_b32 v7, s93")
            A("v_mov_b32 v8, 0")
            A("v_mov_b32 v9, s86")
            A("s_mov_b64 exec, 1")
            A("buffer_atomic_umax v6, v8, s[64:67], 0 offen sc1")
            A("buffer_atomic_umax v7, v8, s[64:67], 0 offen offset:4 sc1")
            A("buffer_atomic_umax v9, v8, s[64:67], 0 offen offset:8 sc1")
            self.label("L_dump5"); self.label("L_dump6")
        elif self.stamp:
            A("s_waitcnt vmcnt(0)")
            self.st(6)
            self.st_dump(7)
            A("s_endpgm")
            self.label("L_dump6")
            self.st_dump(6)
            A("s_endpgm")
            self.label("L_dump5")
            self.st_dump(5)
        else:
            self.label("L_dump5"); self.label("L_dump6")
        self.label("L_end")
        A("s_endpgm")
        self.L.append('.section .rodata,"a"')
        self.L.append(".p2align 6")
        self.L.append(f".amdhsa_kernel {KNAME}")
        self.L.append(f"  .amdhsa_next_free_vgpr {self.NV}")
        self.L.append("  .amdhsa_next_free_sgpr 100")
        self.L.append(f"  .amdhsa_accum_offset {(self.NV+3)//4*4}")
        self.L.append("  .amdhsa_group_segment_fixed_size 0")
        self.L.append("  .amdhsa_kernarg_size 80")
        self.L.append("  .amdhsa_user_sgpr_count 2")
        self.L.append("  .amdhsa_user_sgpr_kernarg_segment_ptr 1")
        self.L.append("  .amdhsa_system_sgpr_workgroup_id_x 1")
        self.L.append("  .amdhsa_float_denorm_mode_32 3")
        self.L.append(".end_amdhsa_kernel")
        return "\n".join(self.L) + "\n"

if __name__ == "__main__":
    out = sys.argv[1]
    NW = int(sys.argv[2]) if len(sys.argv) > 2 else 4
    order = sys.argv[3] if len(sys.argv) > 3 else "contig"
    kfl = sys.argv[4].replace("_"," ").replace("def","") if len(sys.argv) > 4 else "nt"
    vfl = sys.argv[5].replace("_"," ").replace("def","") if len(sys.argv) > 5 else "nt"
    stamp = int(sys.argv[6][5:] or 1) if len(sys.argv) > 6 and sys.argv[6].startswith("stamp") else 0
    pace = int(sys.argv[7]) if len(sys.argv) > 7 else 0
    eb = len(sys.argv) > 8 and sys.argv[8] == "eb"
    vpos = sys.argv[9] if len(sys.argv) > 9 else "postbar"
    open(out, "w").write(Gen(NW, order, kfl=kfl, vfl=vfl, stamp=stamp, pace=pace, earlybar=eb, vpos=vpos, poll=(None if sys.argv[10] == "nopoll" else sys.argv[10]) if len(sys.argv) > 10 else "each").build())
```

```python
import struct, sys, math

KNAME = "standalone__kv_cache_quant_int4_int2_kv_with_per_channel_or_per_token_scales__sampling_kernel"
HEADER = open("standalone__kv_cache_quant_int4_int2_kv_with_per_channel_or_per_token_scales__sampling.s.ref").read().split("; Override launch")[0]

def f32hex(x):
    return "0x%08x" % struct.unpack("<I", struct.pack("<f", x))[0]

C_SCALE = (128.0 ** -0.5) * 1.4426950408889634

class Gen:
    def __init__(self, NW=4, order="contig", ldflags="nt", stamp=False, kfl=None, vfl=None, pace=0, earlybar=False, vpos="postbar", poll=True, pairing="adj", ldsmin=0):
        self.NW = NW
        self.order = order
        self.ldflags = ldflags
        self.kfl = ldflags if kfl is None else kfl
        self.vfl = ldflags if vfl is None else vfl
        self.stamp = stamp
        self.pace = pace
        self.earlybar = earlybar
        self.vpos = vpos
        self.poll = poll
        self.pairing = pairing
        self.ldsmin = ldsmin
        self.L = []
        self.lbl = 0

    def A(self, s):
        self.L.append("  " + s)

    def label(self, s):
        self.L.append(s + ":")

    def newlabel(self, p="L"):
        self.lbl += 1
        return f"{p}_{self.lbl}"

    vTID = 0; vLANE = 1; vOK = 2; vOV = 3; vOS = 4; vLT = 5
    vT = 6
    vM = 14; vLs = 15
    vQB = 16
    vD = 36
    vS = 52
    vVF = 60
    vPB = 68
    vTP = 72
    vO = 80
    vCR = 112
    vVS = 116; vVZ = 120
    vRK = 124
    vRV = 188
    NV = 252
    sK = 24; sV = 28; sVS = 32; sVZ = 36
    sTMP = 40
    sMASK = 44
    sC = 46; sNC = 47
    sW = 48; sBH = 49; sHALF = 50
    sOFF = 51
    sOFS = 52
    sCNT = 53
    sSTEP = 54
    sX = 55; sY = 56; sZ = 57
    sE = 58
    sLQ = 60

    TBL = 0
    def lds_layout(self):
        self.NG = 8
        self.PART = self.NG * 5120
        self.STAT = self.PART + (self.NW+1) * 4224
        self.CTL = self.STAT + (self.NW+1) * 64
        self.LDS = max(self.CTL + 64, self.ldsmin)

    def st(self, k):
        if self.stamp:
            self.A(f"s_memrealtime s[{80+2*k}:{81+2*k}]")

    def st_dump(self, n):
        if not self.stamp: return
        A = self.A
        A("s_mov_b64 exec, -1")
        A("s_getreg_b32 s96, hwreg(HW_REG_XCC_ID)")
        A("s_waitcnt lgkmcnt(0)")
        self.srd(72, 22, 0x1000000)
        A(f"s_mul_i32 s97, s2, {self.NW}")
        A(f"s_add_u32 s97, s97, s{self.sW}")
        A("s_lshl_b32 s97, s97, 6")
        A("s_add_u32 s97, s97, 0x400000")
        for k in range(8):
            A(f"v_mov_b32 v{248+(k&3)}, s{80+2*k}" if k < n else (f"v_mov_b32 v{248+(k&3)}, s96" if k == 7 else f"v_mov_b32 v{248+(k&3)}, 0"))
            if k & 3 == 3:
                A("v_mov_b32 v247, 0")
                A("s_mov_b64 exec, 1")
                A(f"buffer_store_dwordx4 v[248:251], v247, s[72:75], s97 offen offset:{(k>>2)*16}")
                A("s_mov_b64 exec, -1")
                A("s_nop 1")

    def srd(self, d, ptr, nbytes):
        self.A(f"s_mov_b32 s{d}, s{ptr}")
        self.A(f"s_and_b32 s{d+1}, s{ptr+1}, 0xffff")
        self.A(f"s_mov_b32 s{d+2}, {nbytes}")
        self.A(f"s_mov_b32 s{d+3}, 0x20000")

    def ld_k(self, a):
        for i in range(4):
            r = self.vRK + a*16 + i*4
            self.A(f"buffer_load_dwordx4 v[{r}:{r+3}], v{self.vOK}, s[{self.sK}:{self.sK+3}], s{self.sOFF} offen offset:{a*1024+i*128} {self.kfl}")
    def ld_sz(self):
        self.A(f"buffer_load_dwordx4 v[{self.vVS}:{self.vVS+3}], v{self.vOS}, s[{self.sVS}:{self.sVS+3}], s{self.sOFS} offen")
        self.A(f"buffer_load_dwordx4 v[{self.vVZ}:{self.vVZ+3}], v{self.vOS}, s[{self.sVZ}:{self.sVZ+3}], s{self.sOFS} offen")
    def ld_v(self, h):
        for ab in range(8):
            r = self.vRV + h*32 + ab*4
            self.A(f"buffer_load_dwordx4 v[{r}:{r+3}], v{self.vOV}, s[{self.sV}:{self.sV+3}], s{self.sOFF} offen offset:{ab*512+h*256} {self.vfl}")
    def ld_qb(self):
        self.A(f"v_add_u32 v{self.vT}, s{self.sLQ}, v{self.vLT}")
        for it in range(5):
            r = self.vQB + it*4
            self.A(f"ds_read_b128 v[{r}:{r+3}], v{self.vT} offset:{it*1024}")

    def set_step_offsets(self):
        self.A(f"s_lshl_b32 s{self.sX}, s{self.sBH}, 20")
        self.A(f"s_lshl_b32 s{self.sOFF}, s{self.sSTEP}, 14")
        self.A(f"s_add_u32 s{self.sOFF}, s{self.sOFF}, s{self.sX}")
        self.A(f"s_lshr_b32 s{self.sOFS}, s{self.sOFF}, 8")
        self.A(f"s_lshr_b32 s{self.sX}, s{self.sSTEP}, {3 if self.order == 'pinter' else 2}")
        self.A(f"s_and_b32 s{self.sX}, s{self.sX}, {self.NG-1}")
        self.A(f"s_mul_i32 s{self.sLQ}, s{self.sX}, 5120")

    def xlane(self, op, x, t):
        self.A(f"v_mov_b32 v{t}, v{x}")
        self.A("s_nop 1")
        self.A(f"v_permlane16_swap_b32 v{t}, v{x}")
        self.A(f"{op} v{x}, v{x}, v{t}")
        self.A(f"v_mov_b32 v{t}, v{x}")
        self.A("s_nop 1")
        self.A(f"v_permlane32_swap_b32 v{t}, v{x}")
        self.A(f"{op} v{x}, v{x}, v{t}")

    def mfma(self, d, a, b, c):
        cs = "0" if c is None else f"v[{c}:{c+3}]"
        self.A(f"v_mfma_f32_16x16x32_bf16 v[{d}:{d+3}], v[{a}:{a+3}], v[{b}:{b+3}], {cs}")

    def dppadd(self, a):
        d = self.vD + a*4
        for b in range(2):
            self.A(f"v_add_f32_dpp v{self.vS+2*a+b}, v{d+2*b+1}, v{d+2*b} row_ror:8 row_mask:0xf bank_mask:0xf")

    def step(self, pf):
        QB = self.vQB
        Bhi0, Bhi1, Blo0, Blo1, C0 = QB, QB+4, QB+8, QB+12, QB+16
        q = [("K0",4),("K1",4),("K2",4),("K3",4),("SZ",2),("V0",8),("V1",8)]
        def wait_for(name):
            idx = [i for i,(n,_) in enumerate(q) if n == name][0]
            n_after = sum(c for _,c in q[idx+1:])
            del q[:idx+1]
            return n_after
        for a in range(4):
            n = wait_for(f"K{a}")
            if a == 0:
                self.A(f"s_waitcnt vmcnt({n}) lgkmcnt(0)")
            else:
                self.A(f"s_waitcnt vmcnt({n})")
            R = self.vRK + a*16
            for k in range(16):
                self.A(f"v_cvt_f32_i32 v{R+k}, v{R+k}")
            for mm in range(2):
                for k in range(4):
                    self.A(f"v_cvt_pk_bf16_f32 v{R+mm*8+k}, v{R+mm*8+2*k}, v{R+mm*8+2*k+1}")
            if a > 0:
                self.dppadd(a-1)
            else:
                self.A("s_nop 1")
            D = self.vD + a*4
            self.mfma(D, R, Bhi0, C0)
            self.mfma(D, R+8, Bhi1, D)
            self.mfma(D, R, Blo0, D)
            self.mfma(D, R+8, Blo1, D)
            if pf:
                self.ld_k(a); q.append((f"nK{a}",4))
        if pf:
            self.ld_qb()
        else:
            self.A("s_nop 7")
        self.dppadd(3)
        S = self.vS; T = self.vT
        t, u = T+1, T+2
        self.A(f"v_max3_f32 v{t}, v{S}, v{S+1}, v{S+2}")
        self.A(f"v_max3_f32 v{t}, v{t}, v{S+3}, v{S+4}")
        self.A(f"v_max3_f32 v{t}, v{t}, v{S+5}, v{S+6}")
        self.A(f"v_max_f32 v{t}, v{t}, v{S+7}")
        self.xlane("v_max_f32", t, u)
        skip = self.newlabel("Lskip")
        self.A(f"v_cmp_gt_f32 vcc, v{t}, v{self.vM}")
        self.A(f"s_and_b64 s[{self.sE}:{self.sE+1}], vcc, s[{self.sMASK}:{self.sMASK+1}]")
        self.A(f"s_cbranch_scc0 {skip}")
        self.A(f"v_max_f32 v{t}, v{t}, v{self.vM}")
        self.A(f"v_sub_f32 v{u}, v{self.vM}, v{t}")
        self.A(f"v_mul_f32 v{u}, s{self.sC}, v{u}")
        self.A(f"v_exp_f32 v{u}, v{u}")
        self.A(f"v_mov_b32 v{self.vM}, v{t}")
        for k in range(32):
            self.A(f"v_mul_f32 v{self.vO+k}, v{u}, v{self.vO+k}")
        for k in range(4):
            self.A(f"v_mul_f32 v{self.vCR+k}, v{u}, v{self.vCR+k}")
        self.A(f"v_mul_f32 v{self.vLs}, v{u}, v{self.vLs}")
        self.label(skip)
        self.A(f"v_mul_f32 v{t}, s{self.sNC}, v{self.vM}")
        for j in range(8):
            self.A(f"v_fma_f32 v{S+j}, v{S+j}, s{self.sC}, v{t}")
        for j in range(8):
            self.A(f"v_exp_f32 v{S+j}, v{S+j}")
        n = wait_for("SZ")
        self.A(f"s_waitcnt vmcnt({n})")
        VF = self.vVF
        for k in range(4):
            self.A(f"v_lshlrev_b32 v{VF+2*k}, 16, v{self.vVS+k}")
            self.A(f"v_and_b32 v{VF+2*k+1}, 0xffff0000, v{self.vVS+k}")
        for j in range(8):
            self.A(f"v_add_f32 v{self.vLs}, v{self.vLs}, v{S+j}")
        for j in range(8):
            self.A(f"v_mul_f32 v{S+j}, v{S+j}, v{VF+j}")
        for a in range(4):
            self.A(f"v_cvt_pk_bf16_f32 v{self.vPB+a}, v{S+2*a}, v{S+2*a+1}")
        self.A("s_nop 1")
        self.mfma(self.vCR, self.vVZ, self.vPB, self.vCR)
        if pf:
            self.ld_sz(); q.append(("nSZ",2))
        TP = self.vTP
        for h in range(2):
            n = wait_for(f"V{h}")
            self.A(f"s_waitcnt vmcnt({n})")
            R = self.vRV + h*32
            for k in range(32):
                self.A(f"v_cvt_f32_i32 v{R+k}, v{R+k}")
            def pk(c):
                for a in range(4):
                    self.A(f"v_cvt_pk_bf16_f32 v{TP+(c&1)*4+a}, v{R+(2*a)*4+c}, v{R+(2*a+1)*4+c}")
            def mf(c):
                o = self.vO + (h*4+c)*4
                self.mfma(o, TP+(c&1)*4, self.vPB, o)
            pk(0); pk(1); mf(0); pk(2); mf(1); pk(3); mf(2); self.A("s_nop 0"); mf(3)
            if pf:
                self.ld_v(h); q.append((f"nV{h}",8))

    def combine(self, n, AC, ST, PO, M, Lr):
        A = self.A; T = self.vT
        for w in range(n):
            A(f"ds_read_b64 v[{ST+2*w}:{ST+2*w+1}], v{T+3} offset:{w*64}")
        for w in range(n):
            for k in range(4):
                r = PO + w*16 + k*4
                A(f"ds_read_b128 v[{r}:{r+3}], v{T+2} offset:{w*4224+k*16}")
        A(f"s_waitcnt lgkmcnt({min(15,n*4)})")
        if n*4 > 15:
            A(f"s_waitcnt lgkmcnt(15)")
        A(f"v_mov_b32 v{M}, v{ST}")
        for w in range(1, n):
            A(f"v_max_f32 v{M}, v{M}, v{ST+2*w}")
        for w in range(n):
            A(f"v_sub_f32 v{ST+2*w}, v{ST+2*w}, v{M}")
        for w in range(n):
            A(f"v_mul_f32 v{ST+2*w}, s{self.sC}, v{ST+2*w}")
        for w in range(n):
            A(f"v_exp_f32 v{ST+2*w}, v{ST+2*w}")
        A("s_nop 0")
        A(f"v_mul_f32 v{Lr}, v{ST}, v{ST+1}")
        for w in range(1, n):
            A(f"v_fmac_f32 v{Lr}, v{ST+2*w}, v{ST+2*w+1}")

    def combine2(self, n, AC, ST, PO):
        A = self.A
        A("s_waitcnt lgkmcnt(0)")
        for k in range(16):
            A(f"v_mul_f32 v{AC+k}, v{ST}, v{PO+k}")
        for w in range(1, n):
            for k in range(16):
                A(f"v_fmac_f32 v{AC+k}, v{ST+2*w}, v{PO+w*16+k}")

    def store_out(self, AC, ST):
        A = self.A; T = self.vT
        for k in range(8):
            A(f"v_cvt_pk_bf16_f32 v{ST+k}, v{AC+2*k}, v{AC+2*k+1}")
        A(f"v_lshlrev_b32 v{T}, 5, v{self.vLANE}")
        A(f"s_lshl_b32 s{self.sX}, s{self.sBH}, 11")
        A(f"buffer_store_dwordx4 v[{ST}:{ST+3}], v{T}, s[68:71], s{self.sX} offen")
        A(f"buffer_store_dwordx4 v[{ST+4}:{ST+7}], v{T}, s[68:71], s{self.sX} offen offset:16")

    def endgame(self):
        A = self.A; T = self.vT; NW = self.NW
        ST = 16; PO = 64; AC = 40; M = T+4; Lr = T+5
        sFO, sMY, sPB = self.sY, self.sZ, self.sCNT
        A(f"v_mov_b32 v{T}, {self.CTL}")
        A(f"v_mov_b32 v{T+1}, 1")
        A("s_waitcnt lgkmcnt(0)")
        A("s_mov_b64 exec, 1")
        A(f"ds_add_rtn_u32 v{T+1}, v{T}, v{T+1}")
        A("s_mov_b64 exec, -1")
        self.srd(self.sTMP, 22, 256*8192)
        self.srd(64, 20, 256)
        self.srd(68, 18, 8*32*4*128*2)
        A(f"s_lshr_b32 s{sFO}, s{self.sBH}, 2")
        A(f"s_lshl_b32 s{sFO}, s{sFO}, 2")
        A(f"s_add_u32 s{sFO}, s{sFO}, 128")
        A(f"s_and_b32 s{self.sE}, s{self.sBH}, 3")
        A(f"s_lshl_b32 s{self.sE}, s{self.sE}, 3")
        A(f"s_add_u32 s{self.sE+1}, s{self.sE}, s{self.sHALF}")
        A(f"s_lshl_b32 s{sMY}, 1, s{self.sE+1}")
        A(f"s_xor_b32 s{self.sE+1}, s{self.sE+1}, 1")
        A(f"s_lshl_b32 s{sPB}, 1, s{self.sE+1}")
        A(f"v_lshrrev_b32 v{T+4}, 3, v{self.vLANE}")
        A(f"v_and_b32 v{T+5}, 7, v{self.vLANE}")
        A(f"v_mul_u32_u24 v{T+2}, 528, v{T+4}")
        A(f"v_lshl_add_u32 v{T+2}, v{T+5}, 6, v{T+2}")
        A(f"v_add_u32 v{T+2}, {self.PART}, v{T+2}")
        A(f"v_lshlrev_b32 v{T+3}, 3, v{T+4}")
        A(f"v_add_u32 v{T+3}, {self.STAT}, v{T+3}")
        A(f"v_lshlrev_b32 v{T+6}, 3, v{self.vLANE}")
        A(f"v_add_u32 v{T+6}, 4096, v{T+6}")
        A(f"v_mov_b32 v{T+7}, 0")
        A(f"s_lshl_b32 s{self.sOFS}, s{self.sBH}, 1")
        A(f"s_add_u32 s{self.sOFS}, s{self.sOFS}, s{self.sHALF}")
        A(f"s_xor_b32 s{self.sOFF}, s{self.sOFS}, 1")
        A(f"s_lshl_b32 s{self.sOFF}, s{self.sOFF}, 13")
        A(f"s_lshl_b32 s{self.sOFS}, s{self.sOFS}, 13")
        A("s_waitcnt lgkmcnt(0)")
        A(f"v_readfirstlane_b32 s{self.sX}, v{T+1}")
        self.st(4)
        A(f"s_cmp_eq_u32 s{self.sX}, {NW-1}")
        A("s_cbranch_scc1 L_last_arriver")
        if not self.poll:
            A("s_branch L_dump5")
        if self.poll == "loop":
            A(f"s_cmp_lg_u32 s{self.sX}, 0")
            A("s_cbranch_scc1 L_dump5")
            self.label("L_poll")
            A(f"buffer_load_dword v{ST}, v{T+7}, s[64:67], s{sFO} offen sc0 sc1")
            A(f"ds_read_b32 v{ST+1}, v{T}")
            A("s_waitcnt vmcnt(0) lgkmcnt(0)")
            A(f"v_readfirstlane_b32 s{self.sE}, v{ST}")
            A(f"v_readfirstlane_b32 s{self.sE+1}, v{ST+1}")
            A(f"s_and_b32 s{self.sE}, s{self.sE}, s{sPB}")
            A("s_cbranch_scc1 L_fetch")
            A(f"s_cmp_lt_u32 s{self.sE+1}, {NW}")
            A("s_cbranch_scc1 L_poll")
            A("s_branch L_dump5")
        else:
            if self.poll == "first":
                A(f"s_cmp_lg_u32 s{self.sX}, 0")
                A("s_cbranch_scc1 L_dump5")
            A("s_mov_b64 exec, 1")
            A(f"buffer_load_dword v{ST}, v{T+7}, s[64:67], s{sFO} offen sc0 sc1")
            A(f"v_mov_b32 v{ST+1}, 1")
            A("s_waitcnt vmcnt(0)")
            A(f"v_readfirstlane_b32 s{self.sE}, v{ST}")
            A(f"s_and_b32 s{self.sE}, s{self.sE}, s{sPB}")
            A("s_cbranch_scc0 L_dump5")
            A(f"ds_add_rtn_u32 v{ST+1}, v{T}, v{ST+1} offset:8")
            A("s_waitcnt lgkmcnt(0)")
            A(f"v_readfirstlane_b32 s{self.sE}, v{ST+1}")
            A("s_mov_b64 exec, -1")
            A(f"s_cmp_lg_u32 s{self.sE}, 0")
            A("s_cbranch_scc1 L_dump5")
        self.label("L_fetch")
        for k in range(4):
            A(f"buffer_load_dwordx4 v[{PO+4*k}:{PO+4*k+3}], v{self.vLT}, s[{self.sTMP}:{self.sTMP+3}], s{self.sOFF} offen offset:{k*1024} sc0 sc1")
        A(f"buffer_load_dwordx2 v[{ST}:{ST+1}], v{T+6}, s[{self.sTMP}:{self.sTMP+3}], s{self.sOFF} offen sc0 sc1")
        A("s_waitcnt vmcnt(0)")
        for k in range(4):
            A(f"ds_write_b128 v{T+2}, v[{PO+4*k}:{PO+4*k+3}] offset:{NW*4224+k*16}")
        A(f"ds_write_b64 v{T+3}, v[{ST}:{ST+1}] offset:{NW*64}")
        A(f"v_mov_b32 v{T+1}, 1")
        A("s_waitcnt lgkmcnt(0)")
        A(f"ds_write_b32 v{T}, v{T+1} offset:4")
        A("s_branch L_dump5")
        self.label("L_last_arriver")
        A(f"ds_read_b32 v{T+1}, v{T} offset:4")
        A("s_waitcnt lgkmcnt(0)")
        A(f"v_readfirstlane_b32 s{self.sX}, v{T+1}")
        A(f"s_cmp_eq_u32 s{self.sX}, 0")
        A("s_cbranch_scc1 L_slow")
        self.combine(NW+1, AC, ST, PO, M, Lr)
        A(f"v_rcp_f32 v{Lr}, v{Lr}")
        A("s_nop 0")
        for w in range(NW+1):
            A(f"v_mul_f32 v{ST+2*w}, v{ST+2*w}, v{Lr}")
        self.combine2(NW+1, AC, ST, PO)
        self.store_out(AC, ST)
        A("s_branch L_fin")
        self.label("L_slow")
        A(f"buffer_load_dword v{T+1}, v{T+7}, s[64:67], s{sFO} offen sc0 sc1")
        self.combine(NW, AC, ST, PO, M, Lr)
        self.combine2(NW, AC, ST, PO)
        A("s_waitcnt vmcnt(0)")
        A(f"v_readfirstlane_b32 s{self.sE}, v{T+1}")
        A(f"s_and_b32 s{self.sE}, s{self.sE}, s{sPB}")
        A("s_cbranch_scc1 L_merge")
        for k in range(4):
            A(f"buffer_store_dwordx4 v[{AC+4*k}:{AC+4*k+3}], v{self.vLT}, s[{self.sTMP}:{self.sTMP+3}], s{self.sOFS} offen offset:{k*1024} sc0 sc1")
        A(f"buffer_store_dwordx2 v[{M}:{M+1}], v{T+6}, s[{self.sTMP}:{self.sTMP+3}], s{self.sOFS} offen sc0 sc1")
        A(f"v_mov_b32 v{T+1}, s{sMY}")
        A("s_waitcnt vmcnt(0)")
        A("s_mov_b64 exec, 1")
        A(f"buffer_atomic_or v{T+1}, v{T+7}, s[64:67], s{sFO} offen sc0 sc1")
        A("s_waitcnt vmcnt(0)")
        A("s_mov_b64 exec, -1")
        A(f"v_readfirstlane_b32 s{self.sE}, v{T+1}")
        self.st(5)
        A(f"s_and_b32 s{self.sE}, s{self.sE}, s{sPB}")
        A("s_cbranch_scc0 L_dump6")
        self.label("L_merge")
        for k in range(4):
            A(f"buffer_load_dwordx4 v[{PO+4*k}:{PO+4*k+3}], v{self.vLT}, s[{self.sTMP}:{self.sTMP+3}], s{self.sOFF} offen offset:{k*1024} sc0 sc1")
        A(f"buffer_load_dwordx2 v[{ST}:{ST+1}], v{T+6}, s[{self.sTMP}:{self.sTMP+3}], s{self.sOFF} offen sc0 sc1")
        A("s_waitcnt vmcnt(0)")
        A(f"v_max_f32 v{T}, v{M}, v{ST}")
        A(f"v_sub_f32 v{T+1}, v{M}, v{T}")
        A(f"v_sub_f32 v{T+2}, v{ST}, v{T}")
        A(f"v_mul_f32 v{T+1}, s{self.sC}, v{T+1}")
        A(f"v_mul_f32 v{T+2}, s{self.sC}, v{T+2}")
        A(f"v_exp_f32 v{T+1}, v{T+1}")
        A(f"v_exp_f32 v{T+2}, v{T+2}")
        A("s_nop 0")
        A(f"v_mul_f32 v{Lr}, v{T+1}, v{Lr}")
        A(f"v_fmac_f32 v{Lr}, v{T+2}, v{ST+1}")
        A(f"v_rcp_f32 v{Lr}, v{Lr}")
        A("s_nop 0")
        A(f"v_mul_f32 v{T+1}, v{T+1}, v{Lr}")
        A(f"v_mul_f32 v{T+2}, v{T+2}, v{Lr}")
        for k in range(16):
            A(f"v_mul_f32 v{AC+k}, v{T+1}, v{AC+k}")
        for k in range(16):
            A(f"v_fmac_f32 v{AC+k}, v{T+2}, v{PO+k}")
        self.store_out(AC, ST)
        self.label("L_fin")

    def build(self):
        NW = self.NW
        self.lds_layout()
        SPW = 32 // NW
        GPW = self.NG // NW
        A = self.A
        self.L.append(HEADER.rstrip("\n"))
        self.L.append(f"; @launch grid=(256,1,1) block=({NW*64},1,1) lds={self.LDS}")
        self.L.append('.amdgcn_target "amdgcn-amd-amdhsa--gfx950"')
        self.L.append(".text")
        self.L.append(f".globl {KNAME}")
        self.L.append(".p2align 8")
        self.L.append(f".type {KNAME},@function")
        self.L.append(f"{KNAME}:")
        A("s_cmp_ge_u32 s2, 256")
        A("s_cbranch_scc1 L_end")
        A("s_load_dwordx16 s[4:19], s[0:1], 0")
        A("s_load_dwordx4 s[20:23], s[0:1], 64")
        self.st(0)
        if self.stamp:
            for k in range(1,7): A(f"s_mov_b32 s{80+2*k}, 0")
        T = self.vT
        A(f"v_lshrrev_b32 v{T}, 6, v0")
        A(f"v_and_b32 v{self.vLANE}, 63, v0")
        if self.pairing == "adj":
            A(f"s_lshr_b32 s{self.sBH}, s2, 1")
            A(f"s_and_b32 s{self.sHALF}, s2, 1")
        elif self.pairing == "far":
            A(f"s_and_b32 s{self.sBH}, s2, 127")
            A(f"s_lshr_b32 s{self.sHALF}, s2, 7")
        elif self.pairing == "xmaj":
            A(f"s_and_b32 s{self.sBH}, s2, 7"); A(f"s_lshl_b32 s{self.sBH}, s{self.sBH}, 4")
            A(f"s_lshr_b32 s{self.sX}, s2, 4"); A(f"s_add_u32 s{self.sBH}, s{self.sBH}, s{self.sX}")
            A(f"s_bfe_u32 s{self.sHALF}, s2, 0x10003")
        else:
            X, Y, Z, E = self.sX, self.sY, self.sZ, self.sE
            A(f"s_lshr_b32 s{X}, s2, 4"); A(f"s_bfe_u32 s{self.sHALF}, s2, 0x10003"); A(f"s_and_b32 s{Y}, s2, 7")
            A(f"s_cmp_ge_u32 s{X}, 14"); A(f"s_cselect_b32 s{Z}, 14, 0")
            A(f"s_cmp_ge_u32 s{X}, 7"); A(f"s_cselect_b32 s{E}, 7, 0"); A(f"s_max_u32 s{Z}, s{Z}, s{E}")
            A(f"s_sub_u32 s{Z}, s{X}, s{Z}"); A(f"s_add_u32 s{Z}, s{Z}, 1")
            A(f"s_mul_i32 s{Z}, s{Z}, s{self.sHALF}")
            A(f"s_sub_u32 s{Y}, s{Y}, s{Z}"); A(f"s_and_b32 s{Y}, s{Y}, 7")
            A(f"s_lshl_b32 s{self.sBH}, s{X}, 3"); A(f"s_add_u32 s{self.sBH}, s{self.sBH}, s{Y}")
        A(f"v_readfirstlane_b32 s{self.sW}, v{T}")
        n_, g_ = T+1, T+2
        A(f"v_and_b32 v{n_}, 15, v{self.vLANE}")
        A(f"v_lshrrev_b32 v{g_}, 4, v{self.vLANE}")
        A(f"v_lshrrev_b32 v{T+3}, 2, v{n_}")
        A(f"v_lshlrev_b32 v{self.vOK}, 12, v{T+3}")
        A(f"v_bfe_u32 v{T+3}, v{n_}, 1, 1")
        A(f"v_lshl_add_u32 v{self.vOK}, v{T+3}, 9, v{self.vOK}")
        A(f"v_and_b32 v{T+3}, 1, v{n_}")
        A(f"v_lshl_add_u32 v{self.vOK}, v{T+3}, 6, v{self.vOK}")
        A(f"v_lshl_add_u32 v{self.vOK}, v{g_}, 4, v{self.vOK}")
        A(f"v_lshlrev_b32 v{T+4}, 5, v{T+3}")
        A(f"v_lshl_add_u32 v{T+4}, v{g_}, 3, v{T+4}")
        A(f"v_lshrrev_b32 v{T+3}, 3, v{n_}")
        A(f"v_lshlrev_b32 v{T+5}, 5, v{T+3}")
        A(f"v_lshl_add_u32 v{T+5}, v{g_}, 3, v{T+5}")
        A(f"v_and_b32 v{T+3}, 7, v{n_}")
        A(f"v_lshl_add_u32 v{T+6}, v{T+3}, 8, v{T+5}")
        A(f"v_lshlrev_b32 v{self.vOV}, 12, v{g_}")
        A(f"v_lshl_add_u32 v{self.vOV}, v{n_}, 4, v{self.vOV}")
        A(f"v_lshlrev_b32 v{self.vOS}, 4, v{g_}")
        A(f"v_lshlrev_b32 v{self.vLT}, 4, v{self.vLANE}")
        A(f"s_mov_b32 s{self.sMASK}, 0x00ff00ff")
        A(f"s_mov_b32 s{self.sMASK+1}, 0x00ff00ff")
        A(f"s_mov_b32 s{self.sC}, {f32hex(C_SCALE)}")
        A(f"s_mov_b32 s{self.sNC}, {f32hex(-C_SCALE)}")
        A(f"s_lshl_b32 s{self.sSTEP}, s{self.sHALF}, 5")
        if self.order == "pinter":
            assert NW == 4
            A(f"s_lshl_b32 s{self.sSTEP}, s{self.sHALF}, 2")
            A(f"s_add_u32 s{self.sSTEP}, s{self.sSTEP}, s{self.sW}")
            stride = 8
        elif self.order == "contig":
            A(f"s_mul_i32 s{self.sX}, s{self.sW}, {SPW}")
            A(f"s_add_u32 s{self.sSTEP}, s{self.sSTEP}, s{self.sX}")
            stride = 1
        else:
            A(f"s_add_u32 s{self.sSTEP}, s{self.sSTEP}, s{self.sW}")
            stride = NW
        A("s_waitcnt lgkmcnt(0)")
        if self.stamp == 1: self.st(1)
        self.srd(self.sK, 6, 0x8000000)
        self.srd(self.sV, 8, 0x8000000)
        self.srd(self.sVS, 14, 8*16*2048*2)
        self.srd(self.sVZ, 16, 8*16*2048*2)
        self.srd(self.sTMP, 4, 8*32*4*128*2)
        A(f"s_lshl_b32 s{self.sX}, s{self.sBH}, 11")
        for i in range(4):
            A(f"buffer_load_dwordx2 v[{16+2*i}:{17+2*i}], v{T+6}, s[{self.sTMP}:{self.sTMP+3}], s{self.sX} offen offset:{64*i}")
        if self.order == "pinter":
            A(f"s_mul_i32 s{self.sY}, s{self.sW}, {2*GPW}")
            A(f"s_add_u32 s{self.sY}, s{self.sY}, s{self.sHALF}")
            GST = 512
        else:
            A(f"s_lshl_b32 s{self.sY}, s{self.sHALF}, 3")
            A(f"s_mul_i32 s{self.sZ}, s{self.sW}, {GPW}")
            A(f"s_add_u32 s{self.sY}, s{self.sY}, s{self.sZ}")
            GST = 256
        A(f"s_lshl_b32 s{self.sX}, s{self.sBH}, 12")
        A(f"s_lshl_b32 s{self.sY}, s{self.sY}, 8")
        A(f"s_add_u32 s{self.sX}, s{self.sX}, s{self.sY}")
        self.srd(64, 10, 8*16*16*128*2)
        self.srd(68, 12, 8*16*16*128*2)
        KSZ = 52
        for gi in range(GPW):
            for i in range(4):
                r = KSZ + gi*16 + 2*i
                A(f"buffer_load_dwordx2 v[{r}:{r+1}], v{T+5}, s[64:67], s{self.sX} offen offset:{gi*GST+64*i}")
            for i in range(4):
                r = KSZ + gi*16 + 8 + 2*i
                A(f"buffer_load_dwordx2 v[{r}:{r+1}], v{T+4}, s[68:71], s{self.sX} offen offset:{gi*GST+64*i}")
        if self.earlybar:
            A("s_barrier")
        self.set_step_offsets()
        for a in range(4): self.ld_k(a)
        pend = [16]
        defer = []
        if self.vpos.startswith("mix"):
            save = self.L; self.L = []
            self.ld_sz(); self.ld_v(0); self.ld_v(1)
            defer = self.L; self.L = save
        gap = int(self.vpos[3:] or 10) if self.vpos.startswith("mix") else 0
        cnt = [0]
        def B(x):
            A(x)
            cnt[0] += 1
            if defer and cnt[0] % gap == 0:
                self.L.append(defer.pop(0)); pend[0] += 1
        A(f"s_waitcnt vmcnt({pend[0] + GPW*8})")
        if self.stamp == 2: self.st(1)
        QF = 36
        for k in range(8):
            B(f"v_lshlrev_b32 v{QF+2*k}, 16, v{16+k}")
            B(f"v_and_b32 v{QF+2*k+1}, 0xffff0000, v{16+k}")
        A(f"s_mul_i32 s{self.sZ}, s{self.sW}, {GPW*5120}")
        A(f"v_add_u32 v{T+7}, s{self.sZ}, v{self.vLT}")
        for gi in range(GPW):
            A(f"s_waitcnt vmcnt({pend[0] + (GPW-1-gi)*8})")
            KS = KSZ + gi*16; KZ = KS + 8
            QB = self.vQB
            for k in range(8):
                t0, t1, t2, t3 = T, T+1, T+2, T+3
                B(f"v_lshlrev_b32 v{t0}, 16, v{KS+k}")
                B(f"v_and_b32 v{t1}, 0xffff0000, v{KS+k}")
                B(f"v_mul_f32 v{t0}, v{t0}, v{QF+2*k}")
                B(f"v_mul_f32 v{t1}, v{t1}, v{QF+2*k+1}")
                B(f"v_cvt_pk_bf16_f32 v{QB+k}, v{t0}, v{t1}")
                B(f"v_lshlrev_b32 v{t2}, 16, v{QB+k}")
                B(f"v_and_b32 v{t3}, 0xffff0000, v{QB+k}")
                B(f"v_sub_f32 v{t0}, v{t0}, v{t2}")
                B(f"v_sub_f32 v{t1}, v{t1}, v{t3}")
                B(f"v_cvt_pk_bf16_f32 v{QB+8+k}, v{t0}, v{t1}")
            for k in range(8):
                B(f"v_xor_b32 v{KZ+k}, 0x80008000, v{KZ+k}")
            A("s_nop 1")
            C0 = QB+16
            self.mfma(C0, KZ, QB, None)
            self.mfma(C0, KZ+4, QB+4, C0)
            self.mfma(C0, KZ, QB+8, C0)
            self.mfma(C0, KZ+4, QB+12, C0)
            for it in range(4):
                A(f"ds_write_b128 v{T+7}, v[{QB+it*4}:{QB+it*4+3}] offset:{gi*5120+it*1024}")
            A("s_nop 7")
            A(f"ds_write_b128 v{T+7}, v[{C0}:{C0+3}] offset:{gi*5120+4096}")
            if gi + 1 < GPW:
                A("s_waitcnt lgkmcnt(0)")
        self.defer_rest = defer
        if self.vpos == "prebar":
            self.ld_sz(); self.ld_v(0); self.ld_v(1)
        A(f"v_mov_b32 v{T}, {self.CTL}")
        A(f"v_mov_b32 v{T+2}, 0")
        A(f"v_mov_b32 v{T+3}, 0")
        A(f"ds_write_b64 v{T}, v[{T+2}:{T+3}]")
        A(f"ds_write_b64 v{T}, v[{T+2}:{T+3}] offset:8")
        for k in range(32): A(f"v_mov_b32 v{self.vO+k}, 0")
        for k in range(4): A(f"v_mov_b32 v{self.vCR+k}, 0")
        A(f"v_mov_b32 v{self.vM}, 0xff800000")
        A(f"v_mov_b32 v{self.vLs}, 0")
        A("s_waitcnt lgkmcnt(0)")
        A("s_barrier")
        self.st(2)
        if self.vpos == "postbar":
            self.ld_qb()
            self.ld_sz(); self.ld_v(0); self.ld_v(1)
        if self.vpos.startswith("mix"):
            self.L.extend(self.defer_rest)
        if self.stamp == 3:
            A("s_waitcnt vmcnt(30)")
            self.st(1)
        if self.stamp == 4:
            A("s_waitcnt vmcnt(0)")
            self.st(1)
        if self.vpos != "postbar":
            self.ld_qb()
        if SPW > 1:
            A(f"s_mov_b32 s{self.sCNT}, {SPW-1}")
            if self.pace:
                A("s_mov_b32 s98, s80")
            self.label("L_loop")
            if self.pace:
                A(f"s_add_u32 s98, s98, {self.pace}")
                self.label("L_pace")
                A("s_memrealtime s[76:77]")
                A("s_waitcnt lgkmcnt(0)")
                A("s_sub_u32 s99, s76, s98")
                A("s_cmp_lt_i32 s99, 0")
                A("s_cbranch_scc0 L_pace_done")
                A("s_sleep 2")
                A("s_branch L_pace")
                self.label("L_pace_done")
            A(f"s_add_u32 s{self.sSTEP}, s{self.sSTEP}, {stride}")
            self.set_step_offsets()
            self.step(True)
            A(f"s_sub_u32 s{self.sCNT}, s{self.sCNT}, 1")
            A(f"s_cmp_lg_u32 s{self.sCNT}, 0")
            A("s_cbranch_scc1 L_loop")
        self.step(False)
        self.st(3)
        self.xlane("v_add_f32", self.vLs, T)
        A("s_nop 7")
        RR = self.vRK
        for h in range(2):
            for r in range(4):
                for c in range(4):
                    A(f"v_sub_f32 v{RR+h*16+r*4+c}, v{self.vO+(h*4+c)*4+r}, v{self.vCR+r}")
        A(f"v_and_b32 v{T}, 15, v{self.vLANE}")
        A(f"v_lshrrev_b32 v{T+1}, 4, v{self.vLANE}")
        A(f"v_mul_u32_u24 v{T+2}, 528, v{T}")
        A(f"v_lshl_add_u32 v{T+2}, v{T+1}, 6, v{T+2}")
        A(f"s_mul_i32 s{self.sX}, s{self.sW}, 4224")
        A(f"s_add_u32 s{self.sX}, s{self.sX}, {self.PART}")
        A(f"v_add_u32 v{T+2}, s{self.sX}, v{T+2}")
        A(f"s_lshl_b32 s{self.sX}, s{self.sW}, 6")
        A(f"s_add_u32 s{self.sX}, s{self.sX}, {self.STAT}")
        A(f"v_lshlrev_b32 v{T+3}, 3, v{T}")
        A(f"v_add_u32 v{T+3}, s{self.sX}, v{T+3}")
        A(f"s_mov_b64 exec, s[{self.sMASK}:{self.sMASK+1}]")
        for h in range(2):
            for r in range(4):
                rr = RR + h*16 + r*4
                A(f"ds_write_b128 v{T+2}, v[{rr}:{rr+3}] offset:{h*256+r*16}")
        A(f"ds_write_b64 v{T+3}, v[{self.vM}:{self.vM+1}]")
        A("s_mov_b64 exec, -1")
        self.endgame()
        if self.stamp == 9:
            A("s_waitcnt vmcnt(0)")
            self.st(6)
            A("s_waitcnt lgkmcnt(0)")
            A("v_mov_b32 v6, s92")
            A("s_not_b32 s93, s80")
            A("v_mov_b32 v7, s93")
            A("v_mov_b32 v8, 0")
            A("v_mov_b32 v9, s86")
            A("s_mov_b64 exec, 1")
            A("buffer_atomic_umax v6, v8, s[64:67], 0 offen sc1")
            A("buffer_atomic_umax v7, v8, s[64:67], 0 offen offset:4 sc1")
            A("buffer_atomic_umax v9, v8, s[64:67], 0 offen offset:8 sc1")
            self.label("L_dump5"); self.label("L_dump6")
        elif self.stamp:
            A("s_waitcnt vmcnt(0)")
            self.st(6)
            self.st_dump(7)
            A("s_endpgm")
            self.label("L_dump6")
            self.st_dump(6)
            A("s_endpgm")
            self.label("L_dump5")
            self.st_dump(5)
        else:
            self.label("L_dump5"); self.label("L_dump6")
        self.label("L_end")
        A("s_endpgm")
        self.L.append('.section .rodata,"a"')
        self.L.append(".p2align 6")
        self.L.append(f".amdhsa_kernel {KNAME}")
        self.L.append(f"  .amdhsa_next_free_vgpr {self.NV}")
        self.L.append("  .amdhsa_next_free_sgpr 100")
        self.L.append(f"  .amdhsa_accum_offset {(self.NV+3)//4*4}")
        self.L.append("  .amdhsa_group_segment_fixed_size 0")
        self.L.append("  .amdhsa_kernarg_size 80")
        self.L.append("  .amdhsa_user_sgpr_count 2")
        self.L.append("  .amdhsa_user_sgpr_kernarg_segment_ptr 1")
        self.L.append("  .amdhsa_system_sgpr_workgroup_id_x 1")
        self.L.append("  .amdhsa_float_denorm_mode_32 3")
        self.L.append(".end_amdhsa_kernel")
        return "\n".join(self.L) + "\n"

if __name__ == "__main__":
    out = sys.argv[1]
    NW = int(sys.argv[2]) if len(sys.argv) > 2 else 4
    order = sys.argv[3] if len(sys.argv) > 3 else "contig"
    kfl = sys.argv[4].replace("_"," ").replace("def","") if len(sys.argv) > 4 else "nt"
    vfl = sys.argv[5].replace("_"," ").replace("def","") if len(sys.argv) > 5 else "nt"
    stamp = int(sys.argv[6][5:] or 1) if len(sys.argv) > 6 and sys.argv[6].startswith("stamp") else 0
    pace = int(sys.argv[7]) if len(sys.argv) > 7 else 0
    eb = len(sys.argv) > 8 and sys.argv[8] == "eb"
    vpos = sys.argv[9] if len(sys.argv) > 9 else "postbar"
    open(out, "w").write(Gen(NW, order, kfl=kfl, vfl=vfl, stamp=stamp, pace=pace, earlybar=eb, vpos=vpos, poll=(None if sys.argv[10] == "nopoll" else sys.argv[10]) if len(sys.argv) > 10 else "each", pairing=sys.argv[11] if len(sys.argv) > 11 else "adj", ldsmin=int(sys.argv[12]) if len(sys.argv) > 12 else 0).build())
```

```python
import struct, sys, math

KNAME = "standalone__kv_cache_quant_int4_int2_kv_with_per_channel_or_per_token_scales__sampling_kernel"
HEADER = open("standalone__kv_cache_quant_int4_int2_kv_with_per_channel_or_per_token_scales__sampling.s.ref").read().split("; Override launch")[0]

def f32hex(x):
    return "0x%08x" % struct.unpack("<I", struct.pack("<f", x))[0]

C_SCALE = (128.0 ** -0.5) * 1.4426950408889634

class Gen:
    def __init__(self, NW=4, order="contig", ldflags="nt", stamp=False, kfl=None, vfl=None, pace=0, earlybar=False, vpos="postbar", poll=True, pairing="adj", ldsmin=0, rot=0):
        self.NW = NW
        self.order = order
        self.ldflags = ldflags
        self.kfl = ldflags if kfl is None else kfl
        self.vfl = ldflags if vfl is None else vfl
        self.stamp = stamp
        self.pace = pace
        self.earlybar = earlybar
        self.vpos = vpos
        self.poll = poll
        self.pairing = pairing
        self.ldsmin = ldsmin
        self.rot = rot
        self.L = []
        self.lbl = 0

    def A(self, s):
        self.L.append("  " + s)

    def label(self, s):
        self.L.append(s + ":")

    def newlabel(self, p="L"):
        self.lbl += 1
        return f"{p}_{self.lbl}"

    vTID = 0; vLANE = 1; vOK = 2; vOV = 3; vOS = 4; vLT = 5
    vT = 6
    vM = 14; vLs = 15
    vQB = 16
    vD = 36
    vS = 52
    vVF = 60
    vPB = 68
    vTP = 72
    vO = 80
    vCR = 112
    vVS = 116; vVZ = 120
    vRK = 124
    vRV = 188
    NV = 252
    sK = 24; sV = 28; sVS = 32; sVZ = 36
    sTMP = 40
    sMASK = 44
    sC = 46; sNC = 47
    sW = 48; sBH = 49; sHALF = 50
    sOFF = 51
    sOFS = 52
    sCNT = 53
    sSTEP = 54
    sX = 55; sY = 56; sZ = 57
    sE = 58
    sLQ = 60

    TBL = 0
    def lds_layout(self):
        self.NG = 8
        self.PART = self.NG * 5120
        self.STAT = self.PART + (self.NW+1) * 4224
        self.CTL = self.STAT + (self.NW+1) * 64
        self.LDS = max(self.CTL + 64, self.ldsmin)

    def st(self, k):
        if self.stamp:
            self.A(f"s_memrealtime s[{80+2*k}:{81+2*k}]")

    def st_dump(self, n):
        if not self.stamp: return
        A = self.A
        A("s_mov_b64 exec, -1")
        A("s_getreg_b32 s96, hwreg(HW_REG_XCC_ID)")
        A("s_waitcnt lgkmcnt(0)")
        self.srd(72, 22, 0x1000000)
        A(f"s_mul_i32 s97, s2, {self.NW}")
        A(f"s_add_u32 s97, s97, s{self.sW}")
        A("s_lshl_b32 s97, s97, 6")
        A("s_add_u32 s97, s97, 0x400000")
        for k in range(8):
            A(f"v_mov_b32 v{248+(k&3)}, s{80+2*k}" if k < n else (f"v_mov_b32 v{248+(k&3)}, s96" if k == 7 else f"v_mov_b32 v{248+(k&3)}, 0"))
            if k & 3 == 3:
                A("v_mov_b32 v247, 0")
                A("s_mov_b64 exec, 1")
                A(f"buffer_store_dwordx4 v[248:251], v247, s[72:75], s97 offen offset:{(k>>2)*16}")
                A("s_mov_b64 exec, -1")
                A("s_nop 1")

    def srd(self, d, ptr, nbytes):
        self.A(f"s_mov_b32 s{d}, s{ptr}")
        self.A(f"s_and_b32 s{d+1}, s{ptr+1}, 0xffff")
        self.A(f"s_mov_b32 s{d+2}, {nbytes}")
        self.A(f"s_mov_b32 s{d+3}, 0x20000")

    def ld_k(self, a):
        for i in range(4):
            r = self.vRK + a*16 + i*4
            self.A(f"buffer_load_dwordx4 v[{r}:{r+3}], v{self.vOK}, s[{self.sK}:{self.sK+3}], s{self.sOFF} offen offset:{a*1024+i*128} {self.kfl}")
    def ld_sz(self):
        self.A(f"buffer_load_dwordx4 v[{self.vVS}:{self.vVS+3}], v{self.vOS}, s[{self.sVS}:{self.sVS+3}], s{self.sOFS} offen")
        self.A(f"buffer_load_dwordx4 v[{self.vVZ}:{self.vVZ+3}], v{self.vOS}, s[{self.sVZ}:{self.sVZ+3}], s{self.sOFS} offen")
    def ld_v(self, h):
        for ab in range(8):
            r = self.vRV + h*32 + ab*4
            self.A(f"buffer_load_dwordx4 v[{r}:{r+3}], v{self.vOV}, s[{self.sV}:{self.sV+3}], s{self.sOFF} offen offset:{ab*512+h*256} {self.vfl}")
    def ld_qb(self):
        self.A(f"v_add_u32 v{self.vT}, s{self.sLQ}, v{self.vLT}")
        for it in range(5):
            r = self.vQB + it*4
            self.A(f"ds_read_b128 v[{r}:{r+3}], v{self.vT} offset:{it*1024}")

    def set_step_offsets(self):
        self.A(f"s_lshl_b32 s{self.sX}, s{self.sBH}, 20")
        self.A(f"s_lshl_b32 s{self.sOFF}, s{self.sSTEP}, 14")
        self.A(f"s_add_u32 s{self.sOFF}, s{self.sOFF}, s{self.sX}")
        self.A(f"s_lshr_b32 s{self.sOFS}, s{self.sOFF}, 8")
        self.A(f"s_lshr_b32 s{self.sX}, s{self.sSTEP}, {3 if self.order == 'pinter' else 2}")
        self.A(f"s_and_b32 s{self.sX}, s{self.sX}, {self.NG-1}")
        self.A(f"s_mul_i32 s{self.sLQ}, s{self.sX}, 5120")

    def xlane(self, op, x, t):
        self.A(f"v_mov_b32 v{t}, v{x}")
        self.A("s_nop 1")
        self.A(f"v_permlane16_swap_b32 v{t}, v{x}")
        self.A(f"{op} v{x}, v{x}, v{t}")
        self.A(f"v_mov_b32 v{t}, v{x}")
        self.A("s_nop 1")
        self.A(f"v_permlane32_swap_b32 v{t}, v{x}")
        self.A(f"{op} v{x}, v{x}, v{t}")

    def mfma(self, d, a, b, c):
        cs = "0" if c is None else f"v[{c}:{c+3}]"
        self.A(f"v_mfma_f32_16x16x32_bf16 v[{d}:{d+3}], v[{a}:{a+3}], v[{b}:{b+3}], {cs}")

    def dppadd(self, a):
        d = self.vD + a*4
        for b in range(2):
            self.A(f"v_add_f32_dpp v{self.vS+2*a+b}, v{d+2*b+1}, v{d+2*b} row_ror:8 row_mask:0xf bank_mask:0xf")

    def step(self, pf):
        QB = self.vQB
        Bhi0, Bhi1, Blo0, Blo1, C0 = QB, QB+4, QB+8, QB+12, QB+16
        q = [("K0",4),("K1",4),("K2",4),("K3",4),("SZ",2),("V0",8),("V1",8)]
        def wait_for(name):
            idx = [i for i,(n,_) in enumerate(q) if n == name][0]
            n_after = sum(c for _,c in q[idx+1:])
            del q[:idx+1]
            return n_after
        for a in range(4):
            n = wait_for(f"K{a}")
            if a == 0:
                self.A(f"s_waitcnt vmcnt({n}) lgkmcnt(0)")
            else:
                self.A(f"s_waitcnt vmcnt({n})")
            R = self.vRK + a*16
            for k in range(16):
                self.A(f"v_cvt_f32_i32 v{R+k}, v{R+k}")
            for mm in range(2):
                for k in range(4):
                    self.A(f"v_cvt_pk_bf16_f32 v{R+mm*8+k}, v{R+mm*8+2*k}, v{R+mm*8+2*k+1}")
            if a > 0:
                self.dppadd(a-1)
            else:
                self.A("s_nop 1")
            D = self.vD + a*4
            self.mfma(D, R, Bhi0, C0)
            self.mfma(D, R+8, Bhi1, D)
            self.mfma(D, R, Blo0, D)
            self.mfma(D, R+8, Blo1, D)
            if pf:
                self.ld_k(a); q.append((f"nK{a}",4))
        if pf:
            self.ld_qb()
        else:
            self.A("s_nop 7")
        self.dppadd(3)
        S = self.vS; T = self.vT
        t, u = T+1, T+2
        self.A(f"v_max3_f32 v{t}, v{S}, v{S+1}, v{S+2}")
        self.A(f"v_max3_f32 v{t}, v{t}, v{S+3}, v{S+4}")
        self.A(f"v_max3_f32 v{t}, v{t}, v{S+5}, v{S+6}")
        self.A(f"v_max_f32 v{t}, v{t}, v{S+7}")
        self.xlane("v_max_f32", t, u)
        skip = self.newlabel("Lskip")
        self.A(f"v_cmp_gt_f32 vcc, v{t}, v{self.vM}")
        self.A(f"s_and_b64 s[{self.sE}:{self.sE+1}], vcc, s[{self.sMASK}:{self.sMASK+1}]")
        self.A(f"s_cbranch_scc0 {skip}")
        self.A(f"v_max_f32 v{t}, v{t}, v{self.vM}")
        self.A(f"v_sub_f32 v{u}, v{self.vM}, v{t}")
        self.A(f"v_mul_f32 v{u}, s{self.sC}, v{u}")
        self.A(f"v_exp_f32 v{u}, v{u}")
        self.A(f"v_mov_b32 v{self.vM}, v{t}")
        for k in range(32):
            self.A(f"v_mul_f32 v{self.vO+k}, v{u}, v{self.vO+k}")
        for k in range(4):
            self.A(f"v_mul_f32 v{self.vCR+k}, v{u}, v{self.vCR+k}")
        self.A(f"v_mul_f32 v{self.vLs}, v{u}, v{self.vLs}")
        self.label(skip)
        self.A(f"v_mul_f32 v{t}, s{self.sNC}, v{self.vM}")
        for j in range(8):
            self.A(f"v_fma_f32 v{S+j}, v{S+j}, s{self.sC}, v{t}")
        for j in range(8):
            self.A(f"v_exp_f32 v{S+j}, v{S+j}")
        n = wait_for("SZ")
        self.A(f"s_waitcnt vmcnt({n})")
        VF = self.vVF
        for k in range(4):
            self.A(f"v_lshlrev_b32 v{VF+2*k}, 16, v{self.vVS+k}")
            self.A(f"v_and_b32 v{VF+2*k+1}, 0xffff0000, v{self.vVS+k}")
        for j in range(8):
            self.A(f"v_add_f32 v{self.vLs}, v{self.vLs}, v{S+j}")
        for j in range(8):
            self.A(f"v_mul_f32 v{S+j}, v{S+j}, v{VF+j}")
        for a in range(4):
            self.A(f"v_cvt_pk_bf16_f32 v{self.vPB+a}, v{S+2*a}, v{S+2*a+1}")
        self.A("s_nop 1")
        self.mfma(self.vCR, self.vVZ, self.vPB, self.vCR)
        if pf:
            self.ld_sz(); q.append(("nSZ",2))
        TP = self.vTP
        for h in range(2):
            n = wait_for(f"V{h}")
            self.A(f"s_waitcnt vmcnt({n})")
            R = self.vRV + h*32
            for k in range(32):
                self.A(f"v_cvt_f32_i32 v{R+k}, v{R+k}")
            def pk(c):
                for a in range(4):
                    self.A(f"v_cvt_pk_bf16_f32 v{TP+(c&1)*4+a}, v{R+(2*a)*4+c}, v{R+(2*a+1)*4+c}")
            def mf(c):
                o = self.vO + (h*4+c)*4
                self.mfma(o, TP+(c&1)*4, self.vPB, o)
            pk(0); pk(1); mf(0); pk(2); mf(1); pk(3); mf(2); self.A("s_nop 0"); mf(3)
            if pf:
                self.ld_v(h); q.append((f"nV{h}",8))

    def combine(self, n, AC, ST, PO, M, Lr):
        A = self.A; T = self.vT
        for w in range(n):
            A(f"ds_read_b64 v[{ST+2*w}:{ST+2*w+1}], v{T+3} offset:{w*64}")
        for w in range(n):
            for k in range(4):
                r = PO + w*16 + k*4
                A(f"ds_read_b128 v[{r}:{r+3}], v{T+2} offset:{w*4224+k*16}")
        A(f"s_waitcnt lgkmcnt({min(15,n*4)})")
        if n*4 > 15:
            A(f"s_waitcnt lgkmcnt(15)")
        A(f"v_mov_b32 v{M}, v{ST}")
        for w in range(1, n):
            A(f"v_max_f32 v{M}, v{M}, v{ST+2*w}")
        for w in range(n):
            A(f"v_sub_f32 v{ST+2*w}, v{ST+2*w}, v{M}")
        for w in range(n):
            A(f"v_mul_f32 v{ST+2*w}, s{self.sC}, v{ST+2*w}")
        for w in range(n):
            A(f"v_exp_f32 v{ST+2*w}, v{ST+2*w}")
        A("s_nop 0")
        A(f"v_mul_f32 v{Lr}, v{ST}, v{ST+1}")
        for w in range(1, n):
            A(f"v_fmac_f32 v{Lr}, v{ST+2*w}, v{ST+2*w+1}")

    def combine2(self, n, AC, ST, PO):
        A = self.A
        A("s_waitcnt lgkmcnt(0)")
        for k in range(16):
            A(f"v_mul_f32 v{AC+k}, v{ST}, v{PO+k}")
        for w in range(1, n):
            for k in range(16):
                A(f"v_fmac_f32 v{AC+k}, v{ST+2*w}, v{PO+w*16+k}")

    def store_out(self, AC, ST):
        A = self.A; T = self.vT
        for k in range(8):
            A(f"v_cvt_pk_bf16_f32 v{ST+k}, v{AC+2*k}, v{AC+2*k+1}")
        A(f"v_lshlrev_b32 v{T}, 5, v{self.vLANE}")
        A(f"s_lshl_b32 s{self.sX}, s{self.sBH}, 11")
        A(f"buffer_store_dwordx4 v[{ST}:{ST+3}], v{T}, s[68:71], s{self.sX} offen")
        A(f"buffer_store_dwordx4 v[{ST+4}:{ST+7}], v{T}, s[68:71], s{self.sX} offen offset:16")

    def endgame(self):
        A = self.A; T = self.vT; NW = self.NW
        ST = 16; PO = 64; AC = 40; M = T+4; Lr = T+5
        sFO, sMY, sPB = self.sY, self.sZ, self.sCNT
        A(f"v_mov_b32 v{T}, {self.CTL}")
        A(f"v_mov_b32 v{T+1}, 1")
        A("s_waitcnt lgkmcnt(0)")
        A("s_mov_b64 exec, 1")
        A(f"ds_add_rtn_u32 v{T+1}, v{T}, v{T+1}")
        A("s_mov_b64 exec, -1")
        self.srd(self.sTMP, 22, 256*8192)
        self.srd(64, 20, 256)
        self.srd(68, 18, 8*32*4*128*2)
        A(f"s_lshr_b32 s{sFO}, s{self.sBH}, 2")
        A(f"s_lshl_b32 s{sFO}, s{sFO}, 2")
        A(f"s_add_u32 s{sFO}, s{sFO}, 128")
        A(f"s_and_b32 s{self.sE}, s{self.sBH}, 3")
        A(f"s_lshl_b32 s{self.sE}, s{self.sE}, 3")
        A(f"s_add_u32 s{self.sE+1}, s{self.sE}, s{self.sHALF}")
        A(f"s_lshl_b32 s{sMY}, 1, s{self.sE+1}")
        A(f"s_xor_b32 s{self.sE+1}, s{self.sE+1}, 1")
        A(f"s_lshl_b32 s{sPB}, 1, s{self.sE+1}")
        A(f"v_lshrrev_b32 v{T+4}, 3, v{self.vLANE}")
        A(f"v_and_b32 v{T+5}, 7, v{self.vLANE}")
        A(f"v_mul_u32_u24 v{T+2}, 528, v{T+4}")
        A(f"v_lshl_add_u32 v{T+2}, v{T+5}, 6, v{T+2}")
        A(f"v_add_u32 v{T+2}, {self.PART}, v{T+2}")
        A(f"v_lshlrev_b32 v{T+3}, 3, v{T+4}")
        A(f"v_add_u32 v{T+3}, {self.STAT}, v{T+3}")
        A(f"v_lshlrev_b32 v{T+6}, 3, v{self.vLANE}")
        A(f"v_add_u32 v{T+6}, 4096, v{T+6}")
        A(f"v_mov_b32 v{T+7}, 0")
        A(f"s_lshl_b32 s{self.sOFS}, s{self.sBH}, 1")
        A(f"s_add_u32 s{self.sOFS}, s{self.sOFS}, s{self.sHALF}")
        A(f"s_xor_b32 s{self.sOFF}, s{self.sOFS}, 1")
        A(f"s_lshl_b32 s{self.sOFF}, s{self.sOFF}, 13")
        A(f"s_lshl_b32 s{self.sOFS}, s{self.sOFS}, 13")
        A("s_waitcnt lgkmcnt(0)")
        A(f"v_readfirstlane_b32 s{self.sX}, v{T+1}")
        self.st(4)
        A(f"s_cmp_eq_u32 s{self.sX}, {NW-1}")
        A("s_cbranch_scc1 L_last_arriver")
        if not self.poll:
            A("s_branch L_dump5")
        if self.poll == "loop":
            A(f"s_cmp_lg_u32 s{self.sX}, 0")
            A("s_cbranch_scc1 L_dump5")
            self.label("L_poll")
            A(f"buffer_load_dword v{ST}, v{T+7}, s[64:67], s{sFO} offen sc0 sc1")
            A(f"ds_read_b32 v{ST+1}, v{T}")
            A("s_waitcnt vmcnt(0) lgkmcnt(0)")
            A(f"v_readfirstlane_b32 s{self.sE}, v{ST}")
            A(f"v_readfirstlane_b32 s{self.sE+1}, v{ST+1}")
            A(f"s_and_b32 s{self.sE}, s{self.sE}, s{sPB}")
            A("s_cbranch_scc1 L_fetch")
            A(f"s_cmp_lt_u32 s{self.sE+1}, {NW}")
            A("s_cbranch_scc1 L_poll")
            A("s_branch L_dump5")
        else:
            if self.poll == "first":
                A(f"s_cmp_lg_u32 s{self.sX}, 0")
                A("s_cbranch_scc1 L_dump5")
            A("s_mov_b64 exec, 1")
            A(f"buffer_load_dword v{ST}, v{T+7}, s[64:67], s{sFO} offen sc0 sc1")
            A(f"v_mov_b32 v{ST+1}, 1")
            A("s_waitcnt vmcnt(0)")
            A(f"v_readfirstlane_b32 s{self.sE}, v{ST}")
            A(f"s_and_b32 s{self.sE}, s{self.sE}, s{sPB}")
            A("s_cbranch_scc0 L_dump5")
            A(f"ds_add_rtn_u32 v{ST+1}, v{T}, v{ST+1} offset:8")
            A("s_waitcnt lgkmcnt(0)")
            A(f"v_readfirstlane_b32 s{self.sE}, v{ST+1}")
            A("s_mov_b64 exec, -1")
            A(f"s_cmp_lg_u32 s{self.sE}, 0")
            A("s_cbranch_scc1 L_dump5")
        self.label("L_fetch")
        for k in range(4):
            A(f"buffer_load_dwordx4 v[{PO+4*k}:{PO+4*k+3}], v{self.vLT}, s[{self.sTMP}:{self.sTMP+3}], s{self.sOFF} offen offset:{k*1024} sc0 sc1")
        A(f"buffer_load_dwordx2 v[{ST}:{ST+1}], v{T+6}, s[{self.sTMP}:{self.sTMP+3}], s{self.sOFF} offen sc0 sc1")
        A("s_waitcnt vmcnt(0)")
        for k in range(4):
            A(f"ds_write_b128 v{T+2}, v[{PO+4*k}:{PO+4*k+3}] offset:{NW*4224+k*16}")
        A(f"ds_write_b64 v{T+3}, v[{ST}:{ST+1}] offset:{NW*64}")
        A(f"v_mov_b32 v{T+1}, 1")
        A("s_waitcnt lgkmcnt(0)")
        A(f"ds_write_b32 v{T}, v{T+1} offset:4")
        A("s_branch L_dump5")
        self.label("L_last_arriver")
        A(f"ds_read_b32 v{T+1}, v{T} offset:4")
        A("s_waitcnt lgkmcnt(0)")
        A(f"v_readfirstlane_b32 s{self.sX}, v{T+1}")
        A(f"s_cmp_eq_u32 s{self.sX}, 0")
        A("s_cbranch_scc1 L_slow")
        self.combine(NW+1, AC, ST, PO, M, Lr)
        A(f"v_rcp_f32 v{Lr}, v{Lr}")
        A("s_nop 0")
        for w in range(NW+1):
            A(f"v_mul_f32 v{ST+2*w}, v{ST+2*w}, v{Lr}")
        self.combine2(NW+1, AC, ST, PO)
        self.store_out(AC, ST)
        A("s_branch L_fin")
        self.label("L_slow")
        A(f"buffer_load_dword v{T+1}, v{T+7}, s[64:67], s{sFO} offen sc0 sc1")
        self.combine(NW, AC, ST, PO, M, Lr)
        self.combine2(NW, AC, ST, PO)
        A("s_waitcnt vmcnt(0)")
        A(f"v_readfirstlane_b32 s{self.sE}, v{T+1}")
        A(f"s_and_b32 s{self.sE}, s{self.sE}, s{sPB}")
        A("s_cbranch_scc1 L_merge")
        for k in range(4):
            A(f"buffer_store_dwordx4 v[{AC+4*k}:{AC+4*k+3}], v{self.vLT}, s[{self.sTMP}:{self.sTMP+3}], s{self.sOFS} offen offset:{k*1024} sc0 sc1")
        A(f"buffer_store_dwordx2 v[{M}:{M+1}], v{T+6}, s[{self.sTMP}:{self.sTMP+3}], s{self.sOFS} offen sc0 sc1")
        A(f"v_mov_b32 v{T+1}, s{sMY}")
        A("s_waitcnt vmcnt(0)")
        A("s_mov_b64 exec, 1")
        A(f"buffer_atomic_or v{T+1}, v{T+7}, s[64:67], s{sFO} offen sc0 sc1")
        A("s_waitcnt vmcnt(0)")
        A("s_mov_b64 exec, -1")
        A(f"v_readfirstlane_b32 s{self.sE}, v{T+1}")
        self.st(5)
        A(f"s_and_b32 s{self.sE}, s{self.sE}, s{sPB}")
        A("s_cbranch_scc0 L_dump6")
        self.label("L_merge")
        for k in range(4):
            A(f"buffer_load_dwordx4 v[{PO+4*k}:{PO+4*k+3}], v{self.vLT}, s[{self.sTMP}:{self.sTMP+3}], s{self.sOFF} offen offset:{k*1024} sc0 sc1")
        A(f"buffer_load_dwordx2 v[{ST}:{ST+1}], v{T+6}, s[{self.sTMP}:{self.sTMP+3}], s{self.sOFF} offen sc0 sc1")
        A("s_waitcnt vmcnt(0)")
        A(f"v_max_f32 v{T}, v{M}, v{ST}")
        A(f"v_sub_f32 v{T+1}, v{M}, v{T}")
        A(f"v_sub_f32 v{T+2}, v{ST}, v{T}")
        A(f"v_mul_f32 v{T+1}, s{self.sC}, v{T+1}")
        A(f"v_mul_f32 v{T+2}, s{self.sC}, v{T+2}")
        A(f"v_exp_f32 v{T+1}, v{T+1}")
        A(f"v_exp_f32 v{T+2}, v{T+2}")
        A("s_nop 0")
        A(f"v_mul_f32 v{Lr}, v{T+1}, v{Lr}")
        A(f"v_fmac_f32 v{Lr}, v{T+2}, v{ST+1}")
        A(f"v_rcp_f32 v{Lr}, v{Lr}")
        A("s_nop 0")
        A(f"v_mul_f32 v{T+1}, v{T+1}, v{Lr}")
        A(f"v_mul_f32 v{T+2}, v{T+2}, v{Lr}")
        for k in range(16):
            A(f"v_mul_f32 v{AC+k}, v{T+1}, v{AC+k}")
        for k in range(16):
            A(f"v_fmac_f32 v{AC+k}, v{T+2}, v{PO+k}")
        self.store_out(AC, ST)
        self.label("L_fin")

    def build(self):
        NW = self.NW
        self.lds_layout()
        SPW = 32 // NW
        GPW = self.NG // NW
        A = self.A
        self.L.append(HEADER.rstrip("\n"))
        self.L.append(f"; @launch grid=(256,1,1) block=({NW*64},1,1) lds={self.LDS}")
        self.L.append('.amdgcn_target "amdgcn-amd-amdhsa--gfx950"')
        self.L.append(".text")
        self.L.append(f".globl {KNAME}")
        self.L.append(".p2align 8")
        self.L.append(f".type {KNAME},@function")
        self.L.append(f"{KNAME}:")
        A("s_cmp_ge_u32 s2, 256")
        A("s_cbranch_scc1 L_end")
        A("s_load_dwordx16 s[4:19], s[0:1], 0")
        A("s_load_dwordx4 s[20:23], s[0:1], 64")
        self.st(0)
        if self.stamp:
            for k in range(1,7): A(f"s_mov_b32 s{80+2*k}, 0")
        T = self.vT
        A(f"v_lshrrev_b32 v{T}, 6, v0")
        A(f"v_and_b32 v{self.vLANE}, 63, v0")
        if self.pairing == "adj":
            A(f"s_lshr_b32 s{self.sBH}, s2, 1")
            A(f"s_and_b32 s{self.sHALF}, s2, 1")
        elif self.pairing == "far":
            A(f"s_and_b32 s{self.sBH}, s2, 127")
            A(f"s_lshr_b32 s{self.sHALF}, s2, 7")
        elif self.pairing == "xmaj":
            A(f"s_and_b32 s{self.sBH}, s2, 7"); A(f"s_lshl_b32 s{self.sBH}, s{self.sBH}, 4")
            A(f"s_lshr_b32 s{self.sX}, s2, 4"); A(f"s_add_u32 s{self.sBH}, s{self.sBH}, s{self.sX}")
            A(f"s_bfe_u32 s{self.sHALF}, s2, 0x10003")
        else:
            X, Y, Z, E = self.sX, self.sY, self.sZ, self.sE
            A(f"s_lshr_b32 s{X}, s2, 4"); A(f"s_bfe_u32 s{self.sHALF}, s2, 0x10003"); A(f"s_and_b32 s{Y}, s2, 7")
            A(f"s_cmp_ge_u32 s{X}, 14"); A(f"s_cselect_b32 s{Z}, 14, 0")
            A(f"s_cmp_ge_u32 s{X}, 7"); A(f"s_cselect_b32 s{E}, 7, 0"); A(f"s_max_u32 s{Z}, s{Z}, s{E}")
            A(f"s_sub_u32 s{Z}, s{X}, s{Z}"); A(f"s_add_u32 s{Z}, s{Z}, 1")
            A(f"s_mul_i32 s{Z}, s{Z}, s{self.sHALF}")
            A(f"s_sub_u32 s{Y}, s{Y}, s{Z}"); A(f"s_and_b32 s{Y}, s{Y}, 7")
            A(f"s_lshl_b32 s{self.sBH}, s{X}, 3"); A(f"s_add_u32 s{self.sBH}, s{self.sBH}, s{Y}")
        A(f"v_readfirstlane_b32 s{self.sW}, v{T}")
        n_, g_ = T+1, T+2
        A(f"v_and_b32 v{n_}, 15, v{self.vLANE}")
        A(f"v_lshrrev_b32 v{g_}, 4, v{self.vLANE}")
        A(f"v_lshrrev_b32 v{T+3}, 2, v{n_}")
        A(f"v_lshlrev_b32 v{self.vOK}, 12, v{T+3}")
        A(f"v_bfe_u32 v{T+3}, v{n_}, 1, 1")
        A(f"v_lshl_add_u32 v{self.vOK}, v{T+3}, 9, v{self.vOK}")
        A(f"v_and_b32 v{T+3}, 1, v{n_}")
        A(f"v_lshl_add_u32 v{self.vOK}, v{T+3}, 6, v{self.vOK}")
        A(f"v_lshl_add_u32 v{self.vOK}, v{g_}, 4, v{self.vOK}")
        A(f"v_lshlrev_b32 v{T+4}, 5, v{T+3}")
        A(f"v_lshl_add_u32 v{T+4}, v{g_}, 3, v{T+4}")
        A(f"v_lshrrev_b32 v{T+3}, 3, v{n_}")
        A(f"v_lshlrev_b32 v{T+5}, 5, v{T+3}")
        A(f"v_lshl_add_u32 v{T+5}, v{g_}, 3, v{T+5}")
        A(f"v_and_b32 v{T+3}, 7, v{n_}")
        A(f"v_lshl_add_u32 v{T+6}, v{T+3}, 8, v{T+5}")
        A(f"v_lshlrev_b32 v{self.vOV}, 12, v{g_}")
        A(f"v_lshl_add_u32 v{self.vOV}, v{n_}, 4, v{self.vOV}")
        A(f"v_lshlrev_b32 v{self.vOS}, 4, v{g_}")
        A(f"v_lshlrev_b32 v{self.vLT}, 4, v{self.vLANE}")
        A(f"s_mov_b32 s{self.sMASK}, 0x00ff00ff")
        A(f"s_mov_b32 s{self.sMASK+1}, 0x00ff00ff")
        A(f"s_mov_b32 s{self.sC}, {f32hex(C_SCALE)}")
        A(f"s_mov_b32 s{self.sNC}, {f32hex(-C_SCALE)}")
        A(f"s_lshl_b32 s{self.sSTEP}, s{self.sHALF}, 5")
        if self.order == "pinter":
            assert NW == 4
            A(f"s_lshl_b32 s{self.sSTEP}, s{self.sHALF}, 2")
            A(f"s_add_u32 s{self.sSTEP}, s{self.sSTEP}, s{self.sW}")
            stride = 8
            X = self.sX
            if self.rot == 1: A(f"s_lshr_b32 s{X}, s2, 3"); A(f"s_and_b32 s{X}, s{X}, 7")
            elif self.rot == 2: A(f"s_mul_i32 s{X}, s2, 0x9E3779B1"); A(f"s_lshr_b32 s{X}, s{X}, 29")
            elif self.rot == 3: A(f"s_and_b32 s{X}, s2, 7")
            elif self.rot == 4: A(f"s_lshr_b32 s{X}, s{self.sBH}, 2"); A(f"s_and_b32 s{X}, s{X}, 7")
            elif self.rot == 5: A(f"s_and_b32 s{X}, s{self.sBH}, 7")
            if self.rot:
                A(f"s_lshl_b32 s{X}, s{X}, 3"); A(f"s_add_u32 s{self.sSTEP}, s{self.sSTEP}, s{X}")
        elif self.order == "contig":
            A(f"s_mul_i32 s{self.sX}, s{self.sW}, {SPW}")
            A(f"s_add_u32 s{self.sSTEP}, s{self.sSTEP}, s{self.sX}")
            stride = 1
        else:
            A(f"s_add_u32 s{self.sSTEP}, s{self.sSTEP}, s{self.sW}")
            stride = NW
        A("s_waitcnt lgkmcnt(0)")
        if self.stamp == 1: self.st(1)
        self.srd(self.sK, 6, 0x8000000)
        self.srd(self.sV, 8, 0x8000000)
        self.srd(self.sVS, 14, 8*16*2048*2)
        self.srd(self.sVZ, 16, 8*16*2048*2)
        self.srd(self.sTMP, 4, 8*32*4*128*2)
        A(f"s_lshl_b32 s{self.sX}, s{self.sBH}, 11")
        for i in range(4):
            A(f"buffer_load_dwordx2 v[{16+2*i}:{17+2*i}], v{T+6}, s[{self.sTMP}:{self.sTMP+3}], s{self.sX} offen offset:{64*i}")
        if self.order == "pinter":
            A(f"s_mul_i32 s{self.sY}, s{self.sW}, {2*GPW}")
            A(f"s_add_u32 s{self.sY}, s{self.sY}, s{self.sHALF}")
            GST = 512
        else:
            A(f"s_lshl_b32 s{self.sY}, s{self.sHALF}, 3")
            A(f"s_mul_i32 s{self.sZ}, s{self.sW}, {GPW}")
            A(f"s_add_u32 s{self.sY}, s{self.sY}, s{self.sZ}")
            GST = 256
        A(f"s_lshl_b32 s{self.sX}, s{self.sBH}, 12")
        A(f"s_lshl_b32 s{self.sY}, s{self.sY}, 8")
        A(f"s_add_u32 s{self.sX}, s{self.sX}, s{self.sY}")
        self.srd(64, 10, 8*16*16*128*2)
        self.srd(68, 12, 8*16*16*128*2)
        KSZ = 52
        for gi in range(GPW):
            for i in range(4):
                r = KSZ + gi*16 + 2*i
                A(f"buffer_load_dwordx2 v[{r}:{r+1}], v{T+5}, s[64:67], s{self.sX} offen offset:{gi*GST+64*i}")
            for i in range(4):
                r = KSZ + gi*16 + 8 + 2*i
                A(f"buffer_load_dwordx2 v[{r}:{r+1}], v{T+4}, s[68:71], s{self.sX} offen offset:{gi*GST+64*i}")
        if self.earlybar:
            A("s_barrier")
        self.set_step_offsets()
        for a in range(4): self.ld_k(a)
        pend = [16]
        defer = []
        if self.vpos.startswith("mix"):
            save = self.L; self.L = []
            self.ld_sz(); self.ld_v(0); self.ld_v(1)
            defer = self.L; self.L = save
        gap = int(self.vpos[3:] or 10) if self.vpos.startswith("mix") else 0
        cnt = [0]
        def B(x):
            A(x)
            cnt[0] += 1
            if defer and cnt[0] % gap == 0:
                self.L.append(defer.pop(0)); pend[0] += 1
        A(f"s_waitcnt vmcnt({pend[0] + GPW*8})")
        if self.stamp == 2: self.st(1)
        QF = 36
        for k in range(8):
            B(f"v_lshlrev_b32 v{QF+2*k}, 16, v{16+k}")
            B(f"v_and_b32 v{QF+2*k+1}, 0xffff0000, v{16+k}")
        A(f"s_mul_i32 s{self.sZ}, s{self.sW}, {GPW*5120}")
        A(f"v_add_u32 v{T+7}, s{self.sZ}, v{self.vLT}")
        for gi in range(GPW):
            A(f"s_waitcnt vmcnt({pend[0] + (GPW-1-gi)*8})")
            KS = KSZ + gi*16; KZ = KS + 8
            QB = self.vQB
            for k in range(8):
                t0, t1, t2, t3 = T, T+1, T+2, T+3
                B(f"v_lshlrev_b32 v{t0}, 16, v{KS+k}")
                B(f"v_and_b32 v{t1}, 0xffff0000, v{KS+k}")
                B(f"v_mul_f32 v{t0}, v{t0}, v{QF+2*k}")
                B(f"v_mul_f32 v{t1}, v{t1}, v{QF+2*k+1}")
                B(f"v_cvt_pk_bf16_f32 v{QB+k}, v{t0}, v{t1}")
                B(f"v_lshlrev_b32 v{t2}, 16, v{QB+k}")
                B(f"v_and_b32 v{t3}, 0xffff0000, v{QB+k}")
                B(f"v_sub_f32 v{t0}, v{t0}, v{t2}")
                B(f"v_sub_f32 v{t1}, v{t1}, v{t3}")
                B(f"v_cvt_pk_bf16_f32 v{QB+8+k}, v{t0}, v{t1}")
            for k in range(8):
                B(f"v_xor_b32 v{KZ+k}, 0x80008000, v{KZ+k}")
            A("s_nop 1")
            C0 = QB+16
            self.mfma(C0, KZ, QB, None)
            self.mfma(C0, KZ+4, QB+4, C0)
            self.mfma(C0, KZ, QB+8, C0)
            self.mfma(C0, KZ+4, QB+12, C0)
            for it in range(4):
                A(f"ds_write_b128 v{T+7}, v[{QB+it*4}:{QB+it*4+3}] offset:{gi*5120+it*1024}")
            A("s_nop 7")
            A(f"ds_write_b128 v{T+7}, v[{C0}:{C0+3}] offset:{gi*5120+4096}")
            if gi + 1 < GPW:
                A("s_waitcnt lgkmcnt(0)")
        self.defer_rest = defer
        if self.vpos == "prebar":
            self.ld_sz(); self.ld_v(0); self.ld_v(1)
        A(f"v_mov_b32 v{T}, {self.CTL}")
        A(f"v_mov_b32 v{T+2}, 0")
        A(f"v_mov_b32 v{T+3}, 0")
        A(f"ds_write_b64 v{T}, v[{T+2}:{T+3}]")
        A(f"ds_write_b64 v{T}, v[{T+2}:{T+3}] offset:8")
        for k in range(32): A(f"v_mov_b32 v{self.vO+k}, 0")
        for k in range(4): A(f"v_mov_b32 v{self.vCR+k}, 0")
        A(f"v_mov_b32 v{self.vM}, 0xff800000")
        A(f"v_mov_b32 v{self.vLs}, 0")
        A("s_waitcnt lgkmcnt(0)")
        A("s_barrier")
        self.st(2)
        if self.vpos == "postbar":
            self.ld_qb()
            self.ld_sz(); self.ld_v(0); self.ld_v(1)
        if self.vpos.startswith("mix"):
            self.L.extend(self.defer_rest)
        if self.stamp == 3:
            A("s_waitcnt vmcnt(30)")
            self.st(1)
        if self.stamp == 4:
            A("s_waitcnt vmcnt(0)")
            self.st(1)
        if self.vpos != "postbar":
            self.ld_qb()
        if SPW > 1:
            A(f"s_mov_b32 s{self.sCNT}, {SPW-1}")
            if self.pace:
                A("s_mov_b32 s98, s80")
            self.label("L_loop")
            if self.pace:
                A(f"s_add_u32 s98, s98, {self.pace}")
                self.label("L_pace")
                A("s_memrealtime s[76:77]")
                A("s_waitcnt lgkmcnt(0)")
                A("s_sub_u32 s99, s76, s98")
                A("s_cmp_lt_i32 s99, 0")
                A("s_cbranch_scc0 L_pace_done")
                A("s_sleep 2")
                A("s_branch L_pace")
                self.label("L_pace_done")
            A(f"s_add_u32 s{self.sSTEP}, s{self.sSTEP}, {stride}")
            if self.rot: A(f"s_and_b32 s{self.sSTEP}, s{self.sSTEP}, 63")
            self.set_step_offsets()
            self.step(True)
            A(f"s_sub_u32 s{self.sCNT}, s{self.sCNT}, 1")
            A(f"s_cmp_lg_u32 s{self.sCNT}, 0")
            A("s_cbranch_scc1 L_loop")
        self.step(False)
        self.st(3)
        self.xlane("v_add_f32", self.vLs, T)
        A("s_nop 7")
        RR = self.vRK
        for h in range(2):
            for r in range(4):
                for c in range(4):
                    A(f"v_sub_f32 v{RR+h*16+r*4+c}, v{self.vO+(h*4+c)*4+r}, v{self.vCR+r}")
        A(f"v_and_b32 v{T}, 15, v{self.vLANE}")
        A(f"v_lshrrev_b32 v{T+1}, 4, v{self.vLANE}")
        A(f"v_mul_u32_u24 v{T+2}, 528, v{T}")
        A(f"v_lshl_add_u32 v{T+2}, v{T+1}, 6, v{T+2}")
        A(f"s_mul_i32 s{self.sX}, s{self.sW}, 4224")
        A(f"s_add_u32 s{self.sX}, s{self.sX}, {self.PART}")
        A(f"v_add_u32 v{T+2}, s{self.sX}, v{T+2}")
        A(f"s_lshl_b32 s{self.sX}, s{self.sW}, 6")
        A(f"s_add_u32 s{self.sX}, s{self.sX}, {self.STAT}")
        A(f"v_lshlrev_b32 v{T+3}, 3, v{T}")
        A(f"v_add_u32 v{T+3}, s{self.sX}, v{T+3}")
        A(f"s_mov_b64 exec, s[{self.sMASK}:{self.sMASK+1}]")
        for h in range(2):
            for r in range(4):
                rr = RR + h*16 + r*4
                A(f"ds_write_b128 v{T+2}, v[{rr}:{rr+3}] offset:{h*256+r*16}")
        A(f"ds_write_b64 v{T+3}, v[{self.vM}:{self.vM+1}]")
        A("s_mov_b64 exec, -1")
        self.endgame()
        if self.stamp == 9:
            A("s_waitcnt vmcnt(0)")
            self.st(6)
            A("s_waitcnt lgkmcnt(0)")
            A("v_mov_b32 v6, s92")
            A("s_not_b32 s93, s80")
            A("v_mov_b32 v7, s93")
            A("v_mov_b32 v8, 0")
            A("v_mov_b32 v9, s86")
            A("s_mov_b64 exec, 1")
            A("buffer_atomic_umax v6, v8, s[64:67], 0 offen sc1")
            A("buffer_atomic_umax v7, v8, s[64:67], 0 offen offset:4 sc1")
            A("buffer_atomic_umax v9, v8, s[64:67], 0 offen offset:8 sc1")
            self.label("L_dump5"); self.label("L_dump6")
        elif self.stamp:
            A("s_waitcnt vmcnt(0)")
            self.st(6)
            self.st_dump(7)
            A("s_endpgm")
            self.label("L_dump6")
            self.st_dump(6)
            A("s_endpgm")
            self.label("L_dump5")
            self.st_dump(5)
        else:
            self.label("L_dump5"); self.label("L_dump6")
        self.label("L_end")
        A("s_endpgm")
        self.L.append('.section .rodata,"a"')
        self.L.append(".p2align 6")
        self.L.append(f".amdhsa_kernel {KNAME}")
        self.L.append(f"  .amdhsa_next_free_vgpr {self.NV}")
        self.L.append("  .amdhsa_next_free_sgpr 100")
        self.L.append(f"  .amdhsa_accum_offset {(self.NV+3)//4*4}")
        self.L.append("  .amdhsa_group_segment_fixed_size 0")
        self.L.append("  .amdhsa_kernarg_size 80")
        self.L.append("  .amdhsa_user_sgpr_count 2")
        self.L.append("  .amdhsa_user_sgpr_kernarg_segment_ptr 1")
        self.L.append("  .amdhsa_system_sgpr_workgroup_id_x 1")
        self.L.append("  .amdhsa_float_denorm_mode_32 3")
        self.L.append(".end_amdhsa_kernel")
        return "\n".join(self.L) + "\n"

if __name__ == "__main__":
    out = sys.argv[1]
    NW = int(sys.argv[2]) if len(sys.argv) > 2 else 4
    order = sys.argv[3] if len(sys.argv) > 3 else "contig"
    kfl = sys.argv[4].replace("_"," ").replace("def","") if len(sys.argv) > 4 else "nt"
    vfl = sys.argv[5].replace("_"," ").replace("def","") if len(sys.argv) > 5 else "nt"
    stamp = int(sys.argv[6][5:] or 1) if len(sys.argv) > 6 and sys.argv[6].startswith("stamp") else 0
    pace = int(sys.argv[7]) if len(sys.argv) > 7 else 0
    eb = len(sys.argv) > 8 and sys.argv[8] == "eb"
    vpos = sys.argv[9] if len(sys.argv) > 9 else "postbar"
    open(out, "w").write(Gen(NW, order, kfl=kfl, vfl=vfl, stamp=stamp, pace=pace, earlybar=eb, vpos=vpos, poll=(None if sys.argv[10] == "nopoll" else sys.argv[10]) if len(sys.argv) > 10 else "each", pairing=sys.argv[11] if len(sys.argv) > 11 else "adj", ldsmin=int(sys.argv[12]) if len(sys.argv) > 12 else 0, rot=int(sys.argv[13]) if len(sys.argv) > 13 else 0).build())
```

```python
import struct, sys

KNAME = "standalone__kv_cache_quant_int4_int2_kv_with_per_channel_or_per_token_scales__sampling_kernel"
HEADER = open("standalone__kv_cache_quant_int4_int2_kv_with_per_channel_or_per_token_scales__sampling.s.ref").read().split("; Override launch")[0]

def f32hex(x):
    return "0x%08x" % struct.unpack("<I", struct.pack("<f", x))[0]

C_SCALE = (128.0 ** -0.5) * 1.4426950408889634

class Gen:
    def __init__(self, stamp=0, rot=1, gap=10, poll="loop", fl="nt", psleep=4, early=1, dw=3):
        self.stamp = stamp; self.rot = rot; self.gap = gap; self.poll = poll; self.fl = fl; self.psleep = psleep; self.early = early; self.dw = dw
        self.L = []; self.lbl = 0

    def A(self, s, c=None):
        self.L.append("  " + s + (f"    ; {c}" if c else ""))
    def C(self, c):
        self.L.append(f"  ; {c}")
    def label(self, s):
        self.L.append(s + ":")
    def newlabel(self, p="L"):
        self.lbl += 1
        return f"{p}_{self.lbl}"

    vLANE = 1; vOK = 2; vOV = 3; vOS = 4; vLT = 5
    vT = 6
    vM = 14; vLs = 15
    vQB = 16
    vD = 36
    vS = 52
    vVF = 60
    vPB = 68
    vTP = 72
    vO = 80
    vCR = 112
    vVS = 116; vVZ = 120
    vRK = 124
    vRV = 188
    vQ8 = 2; vZ = 3; vGS = 4; vOUT = 252; vTK = 253
    vA = 124
    vST = 36
    NV = 256
    sK = 24; sV = 28; sVS = 32; sVZ = 36
    sWS = 40; sDBG = 64; sOUT = 68
    sMASK = 44
    sC = 46; sNC = 47
    sW = 48; sBH = 49; sHALF = 50
    sOFF = 51; sOFS = 52; sCNT = 53; sSTEP = 54
    sX = 55; sY = 56; sZ = 57; sE = 58
    sLQ = 60
    sPW = 61; sMY = 62; sPB = 63; sMS = 72; sPS = 73; sOB = 74; sNOW = 64
    SL = 8*5120; SP = SL + 3*4096; SS = SP + 6*1024; CTL = SS + 3*64; LDS = CTL + 16
    G = [172, 176, 180, 184, 16, 20]
    G2 = [188, 192, 196, 200, 204, 208]
    def pl(self, p, G=None): return (G or self.G)[p//3] + p % 3
    PWOFF = 7168

    def st(self, k):
        if self.stamp: self.A(f"s_memrealtime s[{80+2*k}:{81+2*k}]")
    def mark(self, x):
        if self.stamp == 8: self.A(f"s_mov_b32 s82, {x}")
    def st_dump(self):
        A = self.A
        A("s_mov_b64 exec, -1")
        A("s_getreg_b32 s96, hwreg(HW_REG_XCC_ID)")
        A("s_waitcnt lgkmcnt(0)")
        self.srd(76, 22, 0x1000000)
        A("s_lshl_b32 s97, s2, 2"); A(f"s_add_u32 s97, s97, s{self.sW}")
        A("s_lshl_b32 s97, s97, 6"); A("s_add_u32 s97, s97, 0x400000")
        for k in range(8):
            A(f"v_mov_b32 v{248+(k&3)}, s{80+2*k}" if k < 7 else f"v_mov_b32 v{248+(k&3)}, s96")
            if k & 3 == 3:
                A("v_mov_b32 v247, 0"); A("s_mov_b64 exec, 1")
                A(f"buffer_store_dwordx4 v[248:251], v247, s[76:79], s97 offen offset:{(k>>2)*16}")
                A("s_mov_b64 exec, -1"); A("s_nop 1")

    def srd(self, d, ptr, nbytes, c=None):
        self.A(f"s_mov_b32 s{d}, s{ptr}", c)
        self.A(f"s_and_b32 s{d+1}, s{ptr+1}, 0xffff")
        self.A(f"s_mov_b32 s{d+2}, {nbytes}")
        self.A(f"s_mov_b32 s{d+3}, 0x20000")

    def ld_k(self, a):
        for i in range(4):
            r = self.vRK + a*16 + i*4
            self.A(f"buffer_load_dwordx4 v[{r}:{r+3}], v{self.vOK}, s[{self.sK}:{self.sK+3}], s{self.sOFF} offen offset:{a*1024+i*128} {self.fl}")
    def ld_sz(self):
        self.A(f"buffer_load_dwordx4 v[{self.vVS}:{self.vVS+3}], v{self.vOS}, s[{self.sVS}:{self.sVS+3}], s{self.sOFS} offen")
        self.A(f"buffer_load_dwordx4 v[{self.vVZ}:{self.vVZ+3}], v{self.vOS}, s[{self.sVZ}:{self.sVZ+3}], s{self.sOFS} offen")
    def ld_v(self, h):
        for ab in range(8):
            r = self.vRV + h*32 + ab*4
            self.A(f"buffer_load_dwordx4 v[{r}:{r+3}], v{self.vOV}, s[{self.sV}:{self.sV+3}], s{self.sOFF} offen offset:{ab*512+h*256} {self.fl}")
    def ld_qb(self):
        self.A(f"v_add_u32 v{self.vT}, s{self.sLQ}, v{self.vLT}")
        for it in range(5):
            r = self.vQB + it*4
            self.A(f"ds_read_b128 v[{r}:{r+3}], v{self.vT} offset:{it*1024}")
    def set_step_offsets(self):
        self.A(f"s_lshl_b32 s{self.sX}, s{self.sBH}, 20")
        self.A(f"s_lshl_b32 s{self.sOFF}, s{self.sSTEP}, 14")
        self.A(f"s_add_u32 s{self.sOFF}, s{self.sOFF}, s{self.sX}", "K/V byte offset of the step")
        self.A(f"s_lshr_b32 s{self.sOFS}, s{self.sOFF}, 8", "v_scales/v_zeros byte offset")
        self.A(f"s_lshr_b32 s{self.sX}, s{self.sSTEP}, 3")
        self.A(f"s_mul_i32 s{self.sLQ}, s{self.sX}, 5120", "LDS table entry of the round")
    def xlane(self, op, x, t):
        self.A(f"v_mov_b32 v{t}, v{x}"); self.A("s_nop 1")
        self.A(f"v_permlane16_swap_b32 v{t}, v{x}")
        self.A(f"{op} v{x}, v{x}, v{t}")
        self.A(f"v_mov_b32 v{t}, v{x}"); self.A("s_nop 1")
        self.A(f"v_permlane32_swap_b32 v{t}, v{x}")
        self.A(f"{op} v{x}, v{x}, v{t}")
    def mfma(self, d, a, b, c):
        cs = "0" if c is None else f"v[{c}:{c+3}]"
        self.A(f"v_mfma_f32_16x16x32_bf16 v[{d}:{d+3}], v[{a}:{a+3}], v[{b}:{b+3}], {cs}")
    def dppadd(self, a):
        d = self.vD + a*4
        for b in range(2):
            self.A(f"v_add_f32_dpp v{self.vS+2*a+b}, v{d+2*b+1}, v{d+2*b} row_ror:8 row_mask:0xf bank_mask:0xf")

    def rd_slots(self):
        A = self.A
        A(f"ds_read_b128 v[{self.vST+8}:{self.vST+11}], v{self.vZ} offset:{self.CTL}", "ticket, done, partner-ready")
        for w in range(3):
            A(f"ds_read_b64 v[{self.vST+2*w}:{self.vST+2*w+1}], v{self.vQ8} offset:{self.SS+w*64}")
        for w in range(3):
            for j in range(4):
                r = self.vA + w*16 + j*4
                A(f"ds_read_b128 v[{r}:{r+3}], v{self.vLT} offset:{self.SL+w*4096+j*1024}")
        for k in range(6):
            A(f"ds_read_b128 v[{self.G[k]}:{self.G[k]+3}], v{self.vLT} offset:{self.SP+k*1024}")

    def dpp_hi(self, dst, src):
        self.A(f"v_mov_b32_dpp v{dst}, v{src} row_ror:8 row_mask:0xf bank_mask:0xc")

    def step(self, pf):
        A = self.A
        QB = self.vQB
        Bhi0, Bhi1, Blo0, Blo1, C0 = QB, QB+4, QB+8, QB+12, QB+16
        q = [("K0",4),("K1",4),("K2",4),("K3",4),("SZ",2),("V0",8),("V1",8)]
        def wait_for(name):
            idx = [i for i,(n,_) in enumerate(q) if n == name][0]
            n_after = sum(c for _,c in q[idx+1:])
            del q[:idx+1]
            return n_after
        for a in range(4):
            n = wait_for(f"K{a}")
            self.C(f"K tile {a}: int32 -> bf16, S^T = K * (q*ks)^T (hi + lo), accumulator starts at -(q*ks).kz")
            A(f"s_waitcnt vmcnt({n}) lgkmcnt(0)" if a == 0 else f"s_waitcnt vmcnt({n})")
            R = self.vRK + a*16
            for k in range(16):
                A(f"v_cvt_f32_i32 v{R+k}, v{R+k}")
            for mm in range(2):
                for k in range(4):
                    A(f"v_cvt_pk_bf16_f32 v{R+mm*8+k}, v{R+mm*8+2*k}, v{R+mm*8+2*k+1}")
            if a > 0: self.dppadd(a-1)
            else: A("s_nop 1")
            D = self.vD + a*4
            self.mfma(D, R, Bhi0, C0)
            self.mfma(D, R+8, Bhi1, D)
            self.mfma(D, R, Blo0, D)
            self.mfma(D, R+8, Blo1, D)
            if pf:
                self.ld_k(a); q.append((f"nK{a}",4))
        if pf: self.ld_qb()
        else:
            self.C("wave 3: speculative read of the pair word and the partner's tagged partial (arrives with the last V data)")
            A(f"s_cmp_lg_u32 s{self.sW}, {self.dw}")
            A("s_cbranch_scc1 L_nospec")
            A(f"buffer_load_dwordx2 v[254:255], v{self.vZ}, s[{self.sWS}:{self.sWS+3}], s{self.sPW} offen sc0 sc1")
            self.gl_partial("load", self.sPS)
            A(f"s_memrealtime s[{self.sNOW}:{self.sNOW+1}]")
            self.label("L_nospec")
            A("s_nop 7")
        self.dppadd(3)
        S = self.vS; T = self.vT
        t, u = T+1, T+2
        self.C("online softmax: running max (true max), rescale only when it grew")
        A(f"v_max3_f32 v{t}, v{S}, v{S+1}, v{S+2}")
        A(f"v_max3_f32 v{t}, v{t}, v{S+3}, v{S+4}")
        A(f"v_max3_f32 v{t}, v{t}, v{S+5}, v{S+6}")
        A(f"v_max_f32 v{t}, v{t}, v{S+7}")
        self.xlane("v_max_f32", t, u)
        skip = self.newlabel("L_norescale")
        A(f"v_cmp_gt_f32 vcc, v{t}, v{self.vM}")
        A(f"s_and_b64 s[{self.sE}:{self.sE+1}], vcc, s[{self.sMASK}:{self.sMASK+1}]")
        A(f"s_cbranch_scc0 {skip}")
        A(f"v_max_f32 v{t}, v{t}, v{self.vM}")
        A(f"v_sub_f32 v{u}, v{self.vM}, v{t}")
        A(f"v_mul_f32 v{u}, s{self.sC}, v{u}")
        A(f"v_exp_f32 v{u}, v{u}")
        A(f"v_mov_b32 v{self.vM}, v{t}")
        for k in range(32): A(f"v_mul_f32 v{self.vO+k}, v{u}, v{self.vO+k}")
        for k in range(4): A(f"v_mul_f32 v{self.vCR+k}, v{u}, v{self.vCR+k}")
        A(f"v_mul_f32 v{self.vLs}, v{u}, v{self.vLs}")
        self.label(skip)
        A(f"v_mul_f32 v{t}, s{self.sNC}, v{self.vM}")
        for j in range(8): A(f"v_fma_f32 v{S+j}, v{S+j}, s{self.sC}, v{t}")
        for j in range(8): A(f"v_exp_f32 v{S+j}, v{S+j}")
        n = wait_for("SZ")
        if pf:
            A(f"s_waitcnt vmcnt({n})")
        else:
            lb = self.newlabel("L_w3")
            A(f"s_waitcnt vmcnt({n+7})")
            A(f"s_cmp_eq_u32 s{self.sW}, {self.dw}")
            A(f"s_cbranch_scc1 {lb}")
            A(f"s_waitcnt vmcnt({n})")
            self.label(lb)
        VF = self.vVF
        for k in range(4):
            A(f"v_lshlrev_b32 v{VF+2*k}, 16, v{self.vVS+k}")
            A(f"v_and_b32 v{VF+2*k+1}, 0xffff0000, v{self.vVS+k}")
        for j in range(8): A(f"v_add_f32 v{self.vLs}, v{self.vLs}, v{S+j}")
        for j in range(8): A(f"v_mul_f32 v{S+j}, v{S+j}, v{VF+j}")
        for a in range(4): A(f"v_cvt_pk_bf16_f32 v{self.vPB+a}, v{S+2*a}, v{S+2*a+1}")
        A("s_nop 1")
        self.mfma(self.vCR, self.vVZ, self.vPB, self.vCR)
        if pf:
            self.ld_sz(); q.append(("nSZ",2))
        else:
            self.xlane("v_add_f32", self.vLs, T)
            A("s_nop 1")
            self.dpp_hi(self.vM, self.vM); self.dpp_hi(self.vLs, self.vLs)
            for r in range(4): self.dpp_hi(self.vCR+r, self.vCR+r)
        TP = self.vTP
        for h in range(2):
            n = wait_for(f"V{h}")
            self.C(f"V half {h}: int32 -> bf16, O^T += V^T * (p*vs)^T")
            def ticket():
                self.C("all data of this wave has arrived: take the merge ticket, read the merge state early")
                A(f"v_mov_b32 v{self.vTK}, 1")
                A("s_mov_b64 exec, 1")
                A(f"ds_add_rtn_u32 v{self.vTK}, v{self.vZ}, v{self.vTK} offset:{self.CTL}")
                A("s_mov_b64 exec, -1")
                self.rd_slots()
            if pf:
                A(f"s_waitcnt vmcnt({n})")
            else:
                lb = self.newlabel("L_w3")
                A(f"s_waitcnt vmcnt({n+7})", "wave 3 has 7 younger speculative loads in flight")
                A(f"s_cmp_eq_u32 s{self.sW}, {self.dw}")
                A(f"s_cbranch_scc1 {lb}")
                A(f"s_waitcnt vmcnt({n})")
                if h == 1: ticket()
                self.label(lb)
            R = self.vRV + h*32
            for k in range(32): A(f"v_cvt_f32_i32 v{R+k}, v{R+k}")
            def pk(c):
                for a in range(4):
                    A(f"v_cvt_pk_bf16_f32 v{TP+(c&1)*4+a}, v{R+(2*a)*4+c}, v{R+(2*a+1)*4+c}")
            def mf(c):
                o = self.vO + (h*4+c)*4
                self.mfma(o, TP+(c&1)*4, self.vPB, o)
            pk(0); pk(1); mf(0); pk(2); mf(1); pk(3); mf(2); A("s_nop 0"); mf(3)
            if not pf and h == 1:
                A(f"s_cmp_lg_u32 s{self.sW}, {self.dw}")
                A("s_cbranch_scc1 L_w3done")
                A("s_waitcnt vmcnt(0) lgkmcnt(0)")
                self.pw_valid(254)
                A("s_cbranch_scc0 L_nodep")
                self.C("pair word valid: every granule must carry the same stamp, else it was read too early")
                for k in range(6):
                    A(f"v_cmp_ne_u32 vcc, v254, v{self.G[k]+3}")
                    A(f"s_or_b64 s[{self.sE}:{self.sE+1}], vcc, " + ("vcc" if k == 0 else f"s[{self.sE}:{self.sE+1}]"))
                A("s_cbranch_scc1 L_nodep")
                A(f"v_mov_b32 v{self.vTK}, 1")
                for k in range(6):
                    A(f"ds_write_b128 v{self.vLT}, v[{self.G[k]}:{self.G[k]+3}] offset:{self.SP+k*1024}")
                A(f"ds_write_b32 v{self.vZ}, v{self.vTK} offset:{self.CTL+8}", "partner-ready = 1 (LDS ops of a wave are ordered)")
                self.label("L_nodep")
                ticket()
                self.label("L_w3done")
            if pf:
                self.ld_v(h); q.append((f"nV{h}",8))

    def pair_consts(self):
        A = self.A
        A(f"s_lshl_b32 s{self.sMS}, s2, 13", "my d_ws slot")
        A(f"s_xor_b32 s{self.sPS}, s{self.sMS}, 0x2000", "partner slot")
        A(f"s_lshl_b32 s{self.sPW}, s{self.sBH}, 14")
        A(f"s_add_u32 s{self.sPW}, s{self.sPW}, {self.PWOFF}", "pair word")
        A(f"s_lshl_b32 s{self.sMY}, s{self.sHALF}, 30")
        A(f"s_or_b32 s{self.sMY}, s{self.sMY}, 0x80000000", "tag bits of my pair-word value")
        A(f"s_xor_b32 s{self.sPB}, s{self.sMY}, 0x40000000", "tag bits of the partner's value")

    def lane_consts(self):
        A = self.A; T = self.vT
        A(f"v_mov_b32 v{self.vZ}, 0")
        A(f"v_and_b32 v{T+1}, 7, v{self.vLANE}")
        A(f"v_lshlrev_b32 v{self.vQ8}, 3, v{T+1}", "q*8")
        A(f"v_add_u32 v{self.vGS}, 4096, v{self.vLT}", "lane*16 + 4096")

    def endgame_setup(self):
        A = self.A; T = self.vT
        self.C("merge-phase addresses (the stream address registers are dead from here on)")
        self.srd(self.sWS, 22, 256*8192, "d_ws")
        self.srd(self.sOUT, 18, 8*32*4*128*2, "d_out")
        self.pair_consts()
        A(f"s_lshl_b32 s{self.sOB}, s{self.sBH}, 11", "output block")
        self.lane_consts()
        A(f"v_lshrrev_b32 v{T+2}, 4, v{self.vLANE}")
        A(f"v_bfe_u32 v{T+3}, v{self.vLANE}, 3, 1")
        A(f"v_lshlrev_b32 v{self.vOUT}, 8, v{T+1}")
        A(f"v_lshl_add_u32 v{self.vOUT}, v{T+2}, 5, v{self.vOUT}")
        A(f"v_lshl_add_u32 v{self.vOUT}, v{T+3}, 7, v{self.vOUT}", "q*256 + h*128 + g*32")

    def pw_valid(self, v):
        A = self.A; E = self.sE; N = self.sNOW
        A(f"v_readfirstlane_b32 s{E}, v{v}")
        A(f"v_readfirstlane_b32 s{E+1}, v{v+1}")
        A(f"s_xor_b32 s{E+1}, s{E+1}, s{self.sPB}")
        A(f"s_sub_u32 s{E}, s{N}, s{E}")
        A(f"s_subb_u32 s{E+1}, s{N+1}, s{E+1}")
        A(f"s_add_u32 s{E}, s{E}, 0x1000000")
        A(f"s_addc_u32 s{E+1}, s{E+1}, 0")
        A(f"s_lshr_b32 s{E}, s{E}, 27")
        A(f"s_or_b32 s{E}, s{E}, s{E+1}")
        A(f"s_cmp_eq_u32 s{E}, 0")

    def pw_clear(self):
        A = self.A; T = self.vT
        A(f"v_mov_b32 v{T}, 0"); A(f"v_mov_b32 v{T+1}, 0")
        A("s_mov_b64 exec, 1")
        A(f"buffer_store_dwordx2 v[{T}:{T+1}], v{self.vZ}, s[{self.sWS}:{self.sWS+3}], s{self.sPW} offen sc0 sc1", "hand-off consumed: clear the pair word")
        A("s_mov_b64 exec, -1")

    def tags_differ(self, vtag, G):
        for k in range(6):
            self.A(f"v_cmp_ne_u32 vcc, v{vtag}, v{G[k]+3}")
            self.A(f"s_or_b64 s[{self.sE}:{self.sE+1}], vcc, " + ("vcc" if k == 0 else f"s[{self.sE}:{self.sE+1}]"))

    def gl_partial(self, op, slot, G=None):
        G = G or self.G
        for k in range(6):
            o = f"offset:{k*1024}" if k < 4 else f"offset:{(k-4)*1024}"
            va = self.vLT if k < 4 else self.vGS
            self.A(f"buffer_{op}_dwordx4 v[{G[k]}:{G[k]+3}], v{va}, s[{self.sWS}:{self.sWS+3}], s{slot} offen {o} sc0 sc1")

    def factors(self, ms, fs, M):
        A = self.A
        A(f"v_max_f32 v{M}, v{ms[0]}, v{ms[1]}")
        for m in ms[2:]: A(f"v_max_f32 v{M}, v{M}, v{m}")
        for m, f in zip(ms, fs): A(f"v_sub_f32 v{f}, v{m}, v{M}")
        for f in fs: A(f"v_mul_f32 v{f}, s{self.sC}, v{f}")
        for f in fs: A(f"v_exp_f32 v{f}, v{f}")
        A("s_nop 0")

    def store_out(self, X):
        A = self.A; W = self.vQB + 8
        for r in range(4):
            for cp in range(2):
                A(f"v_cvt_pk_bf16_f32 v{W+r*2+cp}, v{X+(2*cp)*4+r}, v{X+(2*cp+1)*4+r}")
        for k in range(2):
            A(f"buffer_store_dwordx4 v[{W+k*4}:{W+k*4+3}], v{self.vOUT}, s[{self.sOUT}:{self.sOUT+3}], s{self.sOB} offen offset:{k*16}")

    def merge(self, partner):
        A = self.A; T = self.vT
        O, CR, vA, ST = self.vO, self.vCR, self.vA, self.vST
        F = self.vS; NC = self.vVF
        M, Lr = (T+4, T+5) if partner else (self.pl(16), self.pl(17))
        ms = [self.vM] + [ST+2*w for w in range(3)] + ([self.pl(16)] if partner else [])
        ls = [self.vLs] + [ST+2*w+1 for w in range(3)] + ([self.pl(17)] if partner else [])
        n = len(ms)
        self.factors(ms, [F+k for k in range(n)], M)
        A(f"v_mul_f32 v{Lr}, v{F}, v{ls[0]}")
        for k in range(1, n): A(f"v_fmac_f32 v{Lr}, v{F+k}, v{ls[k]}")
        if partner:
            A(f"v_rcp_f32 v{T+6}, v{Lr}")
            A("s_nop 0")
            for k in range(n): A(f"v_mul_f32 v{F+k}, v{F+k}, v{T+6}")
        for r in range(4): A(f"v_mul_f32 v{NC+r}, v{F}, v{CR+r}")
        for i in range(16): A(f"v_fma_f32 v{O+i}, v{F}, v{O+i}, -v{NC+(i&3)}")
        for w in range(2):
            for i in range(16): A(f"v_fmac_f32 v{O+i}, v{F+1+w}, v{vA+w*16+i}")
        if partner:
            for i in range(16): A(f"v_fmac_f32 v{O+i}, v{F+3}, v{vA+32+i}")
            for i in range(16): A(f"v_fmac_f32 v{O+i}, v{F+4}, v{self.pl(i)}")
        else:
            for i in range(16): A(f"v_fma_f32 v{self.pl(i)}, v{F+3}, v{vA+32+i}, v{O+i}")

    def endgame(self):
        A = self.A; T = self.vT
        O, CR, vA, ST = self.vO, self.vCR, self.vA, self.vST
        F = self.vS; M, Lr = T+4, T+5
        sTK, sDN, sRDY, sOK = self.sX, self.sY, self.sZ, self.sE
        A("s_waitcnt lgkmcnt(0)")
        A(f"v_readfirstlane_b32 s{sTK}, v{self.vTK}")
        A("s_nop 7", "MFMA results -> VALU")
        self.C("spread the partial over all lanes: lane (q+8h, g) keeps the 16 values of d-half h")
        for i in range(16): self.dpp_hi(O+i, O+16+i)
        self.st(4)
        A(f"s_cmp_eq_u32 s{sTK}, 3")
        A("s_cbranch_scc1 L_last")
        self.C("early arriver: deposit O-corr, m, l in LDS slot [ticket]")
        for i in range(16): A(f"v_sub_f32 v{O+i}, v{O+i}, v{CR+(i&3)}")
        A(f"s_lshl_b32 s{sDN}, s{sTK}, 12")
        A(f"v_add_u32 v{T}, s{sDN}, v{self.vLT}")
        A(f"s_lshl_b32 s{sDN}, s{sTK}, 6")
        A(f"v_add_u32 v{T+1}, s{sDN}, v{self.vQ8}")
        A(f"v_mov_b32 v{T+2}, 1")
        for j in range(4):
            A(f"ds_write_b128 v{T}, v[{O+4*j}:{O+4*j+3}] offset:{self.SL+j*1024}")
        A(f"ds_write_b64 v{T+1}, v[{self.vM}:{self.vLs}] offset:{self.SS}")
        A("s_waitcnt lgkmcnt(0)")
        A("s_mov_b64 exec, 1")
        A(f"ds_add_u32 v{self.vZ}, v{T+2} offset:{self.CTL+4}", "done++")
        A("s_branch L_exit")
        self.label("L_respin")
        A("s_sleep 1")
        self.rd_slots()
        A("s_waitcnt lgkmcnt(0)")
        self.label("L_last")
        A(f"v_readfirstlane_b32 s{sDN}, v{ST+9}")
        A(f"v_readfirstlane_b32 s{sRDY}, v{ST+10}")
        A(f"s_cmp_eq_u32 s{sDN}, 3", "the other three waves took their tickets earlier and are depositing")
        A("s_cbranch_scc0 L_respin")
        A(f"s_cmp_eq_u32 s{sRDY}, 0")
        A("s_cbranch_scc1 L_slow")
        self.mark(1)
        self.C("fast path: own + 3 waves + partner workgroup, normalise, store")
        self.pw_clear()
        self.merge(True)
        self.store_out(O)
        A("s_branch L_fin")
        self.label("L_slow")
        self.mark(2)
        G2 = self.G2
        A(f"s_memrealtime s[{self.sNOW}:{self.sNOW+1}]")
        self.merge(False)
        A("s_waitcnt lgkmcnt(0)")
        for k in range(6): A(f"v_mov_b32 v{self.G[k]+3}, s{self.sNOW}")
        A(f"s_or_b32 s{self.sE}, s{self.sNOW+1}, s{self.sMY}")
        A(f"v_mov_b32 v{T}, s{self.sNOW}")
        A(f"v_mov_b32 v{T+1}, s{self.sE}")
        self.C("publish the tagged partial, swap my stamp into the pair word, and read the partner's slot, all at once;")
        self.C("whoever finds the other's stamp merges; the tags tell whether the partner's stores had landed")
        self.gl_partial("store", self.sMS)
        A("s_mov_b64 exec, 1")
        A(f"buffer_atomic_swap_x2 v[{T}:{T+1}], v{self.vZ}, s[{self.sWS}:{self.sWS+3}], s{self.sPW} offen sc0 sc1")
        A("s_mov_b64 exec, -1")
        self.gl_partial("load", self.sPS, G2)
        A("s_waitcnt vmcnt(6)")
        A(f"v_readfirstlane_b32 s{self.sX}, v{T}")
        self.pw_valid(T)
        A("s_cbranch_scc0 L_exit")
        A(f"v_mov_b32 v{T+2}, s{self.sX}")
        self.pw_clear()
        A("s_waitcnt vmcnt(1)")
        self.label("L_retag")
        self.tags_differ(T+2, G2)
        A("s_cbranch_scc0 L_merge")
        self.mark(3)
        self.gl_partial("load", self.sPS, G2)
        A("s_waitcnt vmcnt(0)")
        A("s_branch L_retag")
        self.label("L_merge")
        M, Lr = self.pl(16), self.pl(17)
        self.factors([M, self.pl(16, G2)], [F, F+1], F+2)
        A(f"v_mul_f32 v{Lr}, v{F}, v{Lr}")
        A(f"v_fmac_f32 v{Lr}, v{F+1}, v{self.pl(17, G2)}")
        A(f"v_rcp_f32 v{Lr}, v{Lr}")
        A("s_nop 0")
        for k in range(2): A(f"v_mul_f32 v{F+k}, v{F+k}, v{Lr}")
        for i in range(16): A(f"v_mul_f32 v{O+i}, v{F}, v{self.pl(i)}")
        for i in range(16): A(f"v_fmac_f32 v{O+i}, v{F+1}, v{self.pl(i, G2)}")
        self.store_out(O)
        self.label("L_fin")

    def build(self):
        A = self.A; T = self.vT
        P = self.L.append
        P(HEADER.rstrip("\n"))
        P(f"; @launch grid=(256,1,1) block=(256,1,1) lds={self.LDS}")
        P('.amdgcn_target "amdgcn-amd-amdhsa--gfx950"')
        P(".text"); P(f".globl {KNAME}"); P(".p2align 8"); P(f".type {KNAME},@function"); P(f"{KNAME}:")
        A("s_cmp_ge_u32 s2, 256", "extra workgroups exit")
        A("s_cbranch_scc1 L_end")
        A("s_load_dwordx16 s[4:19], s[0:1], 0", "q qk qv ks kz vs vz out")
        A("s_load_dwordx4 s[20:23], s[0:1], 64", "debug ws")
        self.st(0)
        if self.stamp:
            for k in range(1,7): A(f"s_mov_b32 s{80+2*k}, 0")
        A(f"v_lshrrev_b32 v{T}, 6, v0")
        A(f"v_and_b32 v{self.vLANE}, 63, v0")
        A(f"s_lshr_b32 s{self.sBH}, s2, 1", "(b,hkv)")
        A(f"s_and_b32 s{self.sHALF}, s2, 1")
        A(f"v_readfirstlane_b32 s{self.sW}, v{T}", "wave id")
        n_, g_ = T+1, T+2
        A(f"v_and_b32 v{n_}, 15, v{self.vLANE}")
        A(f"v_lshrrev_b32 v{g_}, 4, v{self.vLANE}")
        self.C("K lane offset: row (8*(m>>2) + ((m>>1)&1)), byte (m&1)*64 + g*16")
        A(f"v_lshrrev_b32 v{T+3}, 2, v{n_}")
        A(f"v_lshlrev_b32 v{self.vOK}, 12, v{T+3}")
        A(f"v_bfe_u32 v{T+3}, v{n_}, 1, 1")
        A(f"v_lshl_add_u32 v{self.vOK}, v{T+3}, 9, v{self.vOK}")
        A(f"v_and_b32 v{T+3}, 1, v{n_}")
        A(f"v_lshl_add_u32 v{self.vOK}, v{T+3}, 6, v{self.vOK}")
        A(f"v_lshl_add_u32 v{self.vOK}, v{g_}, 4, v{self.vOK}")
        A(f"v_lshlrev_b32 v{T+4}, 5, v{T+3}")
        A(f"v_lshl_add_u32 v{T+4}, v{g_}, 3, v{T+4}", "kz (A layout): (n&1)*32 + g*8")
        A(f"v_lshrrev_b32 v{T+3}, 3, v{n_}")
        A(f"v_lshlrev_b32 v{T+5}, 5, v{T+3}")
        A(f"v_lshl_add_u32 v{T+5}, v{g_}, 3, v{T+5}", "ks (B layout): (n>>3)*32 + g*8")
        A(f"v_and_b32 v{T+3}, 7, v{n_}")
        A(f"v_lshl_add_u32 v{T+6}, v{T+3}, 8, v{T+5}", "q (B layout): + (n&7)*256")
        A(f"v_lshlrev_b32 v{self.vOV}, 12, v{g_}")
        A(f"v_lshl_add_u32 v{self.vOV}, v{n_}, 4, v{self.vOV}", "V lane offset: row 8g, byte n*16")
        A(f"v_lshlrev_b32 v{self.vOS}, 4, v{g_}")
        A(f"v_lshlrev_b32 v{self.vLT}, 4, v{self.vLANE}")
        A(f"s_mov_b32 s{self.sMASK}, 0x00ff00ff", "lanes that carry a query row")
        A(f"s_mov_b32 s{self.sMASK+1}, 0x00ff00ff")
        A(f"s_mov_b32 s{self.sC}, {f32hex(C_SCALE)}")
        A(f"s_mov_b32 s{self.sNC}, {f32hex(-C_SCALE)}")
        A(f"s_lshl_b32 s{self.sSTEP}, s{self.sHALF}, 2")
        A(f"s_add_u32 s{self.sSTEP}, s{self.sSTEP}, s{self.sW}", "step = round*8 + half*4 + wave")
        if self.rot:
            A(f"s_and_b32 s{self.sX}, s2, 0x38", "start round (wg>>3)&7")
            A(f"s_add_u32 s{self.sSTEP}, s{self.sSTEP}, s{self.sX}")
        A("s_waitcnt lgkmcnt(0)")
        if self.stamp == 1: self.st(1)
        self.srd(self.sWS, 4, 8*32*4*128*2, "q (temporary use of this descriptor)")
        A(f"s_lshl_b32 s{self.sX}, s{self.sBH}, 11")
        for i in range(4):
            A(f"buffer_load_dwordx2 v[{16+2*i}:{17+2*i}], v{T+6}, s[{self.sWS}:{self.sWS+3}], s{self.sX} offen offset:{64*i}")
        A(f"s_lshl_b32 s{self.sY}, s{self.sW}, 2")
        A(f"s_add_u32 s{self.sY}, s{self.sY}, s{self.sHALF}", "this wave builds table rounds 2w, 2w+1: group = 2*round + half")
        A(f"s_lshl_b32 s{self.sX}, s{self.sBH}, 12")
        A(f"s_lshl_b32 s{self.sY}, s{self.sY}, 8")
        A(f"s_add_u32 s{self.sX}, s{self.sX}, s{self.sY}")
        self.srd(self.sDBG, 10, 8*16*16*128*2, "k_scales (temporary)")
        self.srd(self.sOUT, 12, 8*16*16*128*2, "k_zeros (temporary)")
        KSZ = 52; GPW = 2
        for gi in range(GPW):
            for i in range(4):
                r = KSZ + gi*16 + 2*i
                A(f"buffer_load_dwordx2 v[{r}:{r+1}], v{T+5}, s[{self.sDBG}:{self.sDBG+3}], s{self.sX} offen offset:{gi*512+64*i}")
            for i in range(4):
                r = KSZ + gi*16 + 8 + 2*i
                A(f"buffer_load_dwordx2 v[{r}:{r+1}], v{T+4}, s[{self.sOUT}:{self.sOUT+3}], s{self.sX} offen offset:{gi*512+64*i}")
        self.srd(self.sK, 6, 0x8000000, "qk")
        self.set_step_offsets()
        for a in range(4): self.ld_k(a)
        self.srd(self.sV, 8, 0x8000000, "qv")
        self.srd(self.sVS, 14, 8*16*2048*2, "v_scales")
        self.srd(self.sVZ, 16, 8*16*2048*2, "v_zeros")
        pend = [16]
        save = self.L; self.L = []
        self.ld_sz(); self.ld_v(0); self.ld_v(1)
        defer = self.L; self.L = save
        cnt = [0]
        def B(x):
            self.A(x); cnt[0] += 1
            if defer and cnt[0] % self.gap == 0:
                self.L.append(defer.pop(0)); pend[0] += 1
        self.C("table build: B operands bf16(q*ks) hi/lo and C0 = -(q*ks).kz; first V loads interleaved")
        self.A(f"s_waitcnt vmcnt({pend[0] + GPW*8})")
        QF = 36
        for k in range(8):
            B(f"v_lshlrev_b32 v{QF+2*k}, 16, v{16+k}")
            B(f"v_and_b32 v{QF+2*k+1}, 0xffff0000, v{16+k}")
        self.A(f"s_mul_i32 s{self.sZ}, s{self.sW}, {GPW*5120}")
        self.A(f"v_add_u32 v{T+7}, s{self.sZ}, v{self.vLT}")
        QB = self.vQB
        for gi in range(GPW):
            self.A(f"s_waitcnt vmcnt({pend[0] + (GPW-1-gi)*8})")
            KS = KSZ + gi*16; KZ = KS + 8
            for k in range(8):
                t0, t1, t2, t3 = T, T+1, T+2, T+3
                B(f"v_lshlrev_b32 v{t0}, 16, v{KS+k}")
                B(f"v_and_b32 v{t1}, 0xffff0000, v{KS+k}")
                B(f"v_mul_f32 v{t0}, v{t0}, v{QF+2*k}")
                B(f"v_mul_f32 v{t1}, v{t1}, v{QF+2*k+1}")
                B(f"v_cvt_pk_bf16_f32 v{QB+k}, v{t0}, v{t1}")
                B(f"v_lshlrev_b32 v{t2}, 16, v{QB+k}")
                B(f"v_and_b32 v{t3}, 0xffff0000, v{QB+k}")
                B(f"v_sub_f32 v{t0}, v{t0}, v{t2}")
                B(f"v_sub_f32 v{t1}, v{t1}, v{t3}")
                B(f"v_cvt_pk_bf16_f32 v{QB+8+k}, v{t0}, v{t1}")
            for k in range(8):
                B(f"v_xor_b32 v{KZ+k}, 0x80008000, v{KZ+k}")
            self.A("s_nop 1")
            C0 = QB+16
            self.mfma(C0, KZ, QB, None)
            self.mfma(C0, KZ+4, QB+4, C0)
            self.mfma(C0, KZ, QB+8, C0)
            self.mfma(C0, KZ+4, QB+12, C0)
            for it in range(4):
                self.A(f"ds_write_b128 v{T+7}, v[{QB+it*4}:{QB+it*4+3}] offset:{gi*5120+it*1024}")
            self.A("s_nop 7")
            self.A(f"ds_write_b128 v{T+7}, v[{C0}:{C0+3}] offset:{gi*5120+4096}")
            if gi + 1 < GPW: self.A("s_waitcnt lgkmcnt(0)")
        A = self.A
        for k in range(4): A(f"v_mov_b32 v{T+k}, 0")
        A(f"ds_write_b128 v{T}, v[{T}:{T+3}] offset:{self.CTL}", "ticket, done, partner-ready = 0")
        for k in range(32): A(f"v_mov_b32 v{self.vO+k}, 0")
        for k in range(4): A(f"v_mov_b32 v{self.vCR+k}, 0")
        A(f"v_mov_b32 v{self.vM}, 0xff800000")
        A(f"v_mov_b32 v{self.vLs}, 0")
        A("s_waitcnt lgkmcnt(0)")
        A("s_barrier")
        self.st(2)
        self.L.extend(defer)
        self.ld_qb()
        A(f"s_mov_b32 s{self.sCNT}, 7")
        self.label("L_loop")
        A(f"s_add_u32 s{self.sSTEP}, s{self.sSTEP}, 8")
        A(f"s_and_b32 s{self.sSTEP}, s{self.sSTEP}, 63")
        self.set_step_offsets()
        self.step(True)
        A(f"s_sub_u32 s{self.sCNT}, s{self.sCNT}, 1")
        A(f"s_cmp_lg_u32 s{self.sCNT}, 0")
        A("s_cbranch_scc1 L_loop")
        self.endgame_setup()
        self.step(False)
        self.st(3)
        self.endgame()
        if self.stamp:
            A("s_waitcnt vmcnt(0)")
            self.st(6)
            self.label("L_exit")
            self.st_dump()
        else:
            self.label("L_exit")
        self.label("L_end")
        A("s_endpgm")
        P = self.L.append
        P('.section .rodata,"a"'); P(".p2align 6"); P(f".amdhsa_kernel {KNAME}")
        P(f"  .amdhsa_next_free_vgpr {self.NV}")
        P(f"  .amdhsa_next_free_sgpr {100 if self.stamp else 80}")
        P(f"  .amdhsa_accum_offset {self.NV}")
        P("  .amdhsa_group_segment_fixed_size 0")
        P("  .amdhsa_kernarg_size 80")
        P("  .amdhsa_user_sgpr_count 2")
        P("  .amdhsa_user_sgpr_kernarg_segment_ptr 1")
        P("  .amdhsa_system_sgpr_workgroup_id_x 1")
        P("  .amdhsa_float_denorm_mode_32 3")
        P(".end_amdhsa_kernel")
        return "\n".join(self.L) + "\n"

if __name__ == "__main__":
    out = sys.argv[1]
    kw = {}
    for a in sys.argv[2:]:
        k, v = a.split("=")
        kw[k] = int(v) if v.lstrip("-").isdigit() else v
    open(out, "w").write(Gen(**kw).build())
```

```python
import struct, sys

KNAME = "standalone__kv_cache_quant_int4_int2_kv_with_per_channel_or_per_token_scales__sampling_kernel"
HEADER = open("standalone__kv_cache_quant_int4_int2_kv_with_per_channel_or_per_token_scales__sampling.s.ref").read().split("; Override launch")[0]

def f32hex(x):
    return "0x%08x" % struct.unpack("<I", struct.pack("<f", x))[0]

C_SCALE = (128.0 ** -0.5) * 1.4426950408889634

class Gen:
    def __init__(self, stamp=0, rot=1, gap=10, poll="loop", fl="nt", psleep=4, early=1, dw=3, nb=4, kfirst=1, far=0, ldsmin=0, ofl=""):
        self.stamp = stamp; self.rot = rot; self.gap = gap; self.poll = poll; self.fl = fl; self.psleep = psleep; self.early = early; self.dw = dw; self.nb = nb; self.kfirst = kfirst; self.far = far; self.ldsmin = ldsmin; self.ofl = ofl.replace("_", " ")
        self.L = []; self.lbl = 0

    def A(self, s, c=None):
        self.L.append("  " + s + (f"    ; {c}" if c else ""))
    def C(self, c):
        self.L.append(f"  ; {c}")
    def label(self, s):
        self.L.append(s + ":")
    def newlabel(self, p="L"):
        self.lbl += 1
        return f"{p}_{self.lbl}"

    vLANE = 1; vOK = 2; vOV = 3; vOS = 4; vLT = 5
    vT = 6
    vM = 14; vLs = 15
    vQB = 16
    vD = 36
    vS = 52
    vVF = 60
    vPB = 68
    vTP = 72
    OPV = [36, 40, 44, 48, 60, 64, 72, 76]
    vO = 80
    vCR = 112
    vVS = 116; vVZ = 120
    vRK = 124
    vRV = 188
    vQ8 = 2; vZ = 3; vGS = 4; vOUT = 252; vTK = 253
    vA = 124
    vST = 24
    NV = 256
    sK = 24; sV = 28; sVS = 32; sVZ = 36
    sWS = 40; sDBG = 64; sOUT = 68
    sMASK = 44
    sC = 46; sNC = 47
    sW = 48; sBH = 49; sHALF = 50
    sOFF = 51; sOFS = 52; sCNT = 53; sSTEP = 54
    sX = 55; sY = 56; sZ = 57; sE = 58
    sLQ = 60
    sTA = 76
    sPW = 61; sMY = 62; sPB = 63; sMS = 72; sPS = 73; sOB = 74; sNOW = 64
    SL = 8*5120; SP = SL + 3*4096; SS = SP + 6*1024; CTL = SS + 3*64; LDS = CTL + 16
    G = [172, 176, 180, 184, 16, 20]
    G2 = [188, 192, 196, 200, 204, 208]
    def pl(self, p, G=None): return (G or self.G)[p//3] + p % 3
    PWOFF = 7168

    def st(self, k):
        if self.stamp: self.A(f"s_memrealtime s[{80+2*k}:{81+2*k}]")
    def mark(self, x):
        if self.stamp == 8: self.A(f"s_mov_b32 s82, {x}")
    def st_dump(self):
        A = self.A
        A("s_mov_b64 exec, -1")
        A("s_getreg_b32 s96, hwreg(HW_REG_XCC_ID)")
        A("s_waitcnt lgkmcnt(0)")
        self.srd(24, 22, 0x1000000)
        A("s_lshl_b32 s97, s2, 2"); A(f"s_add_u32 s97, s97, s{self.sW}")
        A("s_lshl_b32 s97, s97, 6"); A("s_add_u32 s97, s97, 0x400000")
        for k in range(8):
            A(f"v_mov_b32 v{248+(k&3)}, s{80+2*k}" if k < 7 else f"v_mov_b32 v{248+(k&3)}, s96")
            if k & 3 == 3:
                A("v_mov_b32 v247, 0"); A("s_mov_b64 exec, 1")
                A(f"buffer_store_dwordx4 v[248:251], v247, s[24:27], s97 offen offset:{(k>>2)*16}")
                A("s_mov_b64 exec, -1"); A("s_nop 1")

    def srd(self, d, ptr, nbytes, c=None):
        self.A(f"s_mov_b32 s{d}, s{ptr}", c)
        self.A(f"s_and_b32 s{d+1}, s{ptr+1}, 0xffff")
        self.A(f"s_mov_b32 s{d+2}, {nbytes}")
        self.A(f"s_mov_b32 s{d+3}, 0x20000")

    def ld_k(self, a):
        for i in range(4):
            r = self.vRK + a*16 + i*4
            self.A(f"buffer_load_dwordx4 v[{r}:{r+3}], v{self.vOK}, s[{self.sK}:{self.sK+3}], s{self.sTA+a} offen offset:{i*128} {self.fl}")
    def ld_sz(self):
        for a in range(4):
            self.A(f"buffer_load_dword v{self.vVS+a}, v{self.vOS}, s[{self.sVS}:{self.sVS+3}], s{self.sOFS} offen offset:{a*64}")
        for a in range(4):
            self.A(f"buffer_load_dword v{self.vVZ+a}, v{self.vOS}, s[{self.sVZ}:{self.sVZ+3}], s{self.sOFS} offen offset:{a*64}")
    def ld_v(self, u):
        for j in range(8):
            a, b, h = 2*u + (j >> 2), (j >> 1) & 1, j & 1
            r = self.vRV + u*32 + j*4
            self.A(f"buffer_load_dwordx4 v[{r}:{r+3}], v{self.vOV}, s[{self.sV}:{self.sV+3}], s{self.sTA+a} offen offset:{b*512+h*256} {self.fl}")
    def ld_qb(self):
        self.A(f"v_add_u32 v{self.vT}, s{self.sLQ}, v{self.vLT}")
        for it in range(5):
            r = self.vQB + it*4
            self.A(f"ds_read_b128 v[{r}:{r+3}], v{self.vT} offset:{it*1024}")
    def set_step_offsets(self):
        self.A(f"s_lshl_b32 s{self.sTA}, s{self.sSTEP}, 17")
        self.A(f"s_add_u32 s{self.sTA}, s{self.sTA}, s{self.sOFF}", "K/V byte offset of tile 0")
        for a in range(1, 4):
            self.A(f"s_add_u32 s{self.sTA+a}, s{self.sTA}, {a*16384}")
        self.A(f"s_lshr_b32 s{self.sOFS}, s{self.sTA}, 8", "v_scales/v_zeros byte offset")
        self.A(f"s_mul_i32 s{self.sLQ}, s{self.sSTEP}, 5120", "LDS table entry of the round")
    def xlane(self, op, x, t):
        self.A(f"v_mov_b32 v{t}, v{x}"); self.A("s_nop 1")
        self.A(f"v_permlane16_swap_b32 v{t}, v{x}")
        self.A(f"{op} v{x}, v{x}, v{t}")
        self.A(f"v_mov_b32 v{t}, v{x}"); self.A("s_nop 1")
        self.A(f"v_permlane32_swap_b32 v{t}, v{x}")
        self.A(f"{op} v{x}, v{x}, v{t}")
    def mfma(self, d, a, b, c):
        cs = "0" if c is None else f"v[{c}:{c+3}]"
        self.A(f"v_mfma_f32_16x16x32_bf16 v[{d}:{d+3}], v[{a}:{a+3}], v[{b}:{b+3}], {cs}")
    def dppadd(self, a):
        d = self.vD + a*4
        for b in range(2):
            self.A(f"v_add_f32_dpp v{self.vS+2*a+b}, v{d+2*b+1}, v{d+2*b} row_ror:8 row_mask:0xf bank_mask:0xf")

    def rd_slots(self):
        A = self.A
        A(f"ds_read_b128 v[{self.vST+8}:{self.vST+11}], v{self.vZ} offset:{self.CTL}", "ticket, done, partner-ready")
        for w in range(3):
            A(f"ds_read_b64 v[{self.vST+2*w}:{self.vST+2*w+1}], v{self.vQ8} offset:{self.SS+w*64}")
        for w in range(3):
            for j in range(4):
                r = self.vA + w*16 + j*4
                A(f"ds_read_b128 v[{r}:{r+3}], v{self.vLT} offset:{self.SL+w*4096+j*1024}")
        for k in range(6):
            A(f"ds_read_b128 v[{self.G[k]}:{self.G[k]+3}], v{self.vLT} offset:{self.SP+k*1024}")

    def dpp_hi(self, dst, src):
        self.A(f"v_mov_b32_dpp v{dst}, v{src} row_ror:8 row_mask:0xf bank_mask:0xc")

    def step(self, pf):
        A = self.A
        QB = self.vQB
        Bhi0, Bhi1, Blo0, Blo1, C0 = QB, QB+4, QB+8, QB+12, QB+16
        q = [("K0",4),("K1",4),("K2",4),("K3",4),("SZ",8),("V0",8),("V1",8)]
        def wait_for(name):
            idx = [i for i,(n,_) in enumerate(q) if n == name][0]
            n_after = sum(c for _,c in q[idx+1:])
            del q[:idx+1]
            return n_after
        for a in range(4):
            n = wait_for(f"K{a}")
            self.C(f"K tile {a}: int32 -> bf16, S^T = K * (q*ks)^T (hi + lo), accumulator starts at -(q*ks).kz")
            A(f"s_waitcnt vmcnt({n}) lgkmcnt(0)" if a == 0 else f"s_waitcnt vmcnt({n})")
            R = self.vRK + a*16
            for k in range(16):
                A(f"v_cvt_f32_i32 v{R+k}, v{R+k}")
            for mm in range(2):
                for k in range(4):
                    A(f"v_cvt_pk_bf16_f32 v{R+mm*8+k}, v{R+mm*8+2*k}, v{R+mm*8+2*k+1}")
            if a > 0: self.dppadd(a-1)
            else: A("s_nop 1")
            D = self.vD + a*4
            self.mfma(D, R, Bhi0, C0)
            self.mfma(D, R+8, Bhi1, D)
            self.mfma(D, R, Blo0, D)
            self.mfma(D, R+8, Blo1, D)
            if pf:
                self.ld_k(a); q.append((f"nK{a}",4))
        if pf: self.ld_qb()
        else:
            self.C("wave 3: speculative read of the pair word and the partner's tagged partial (arrives with the last V data)")
            A(f"s_cmp_lg_u32 s{self.sW}, {self.dw}")
            A("s_cbranch_scc1 L_nospec")
            A(f"buffer_load_dwordx2 v[254:255], v{self.vZ}, s[{self.sWS}:{self.sWS+3}], s{self.sPW} offen sc0 sc1")
            self.gl_partial("load", self.sPS)
            A(f"s_memrealtime s[{self.sNOW}:{self.sNOW+1}]")
            self.label("L_nospec")
            A("s_nop 7")
        self.dppadd(3)
        S = self.vS; T = self.vT
        t, u = T+1, T+2
        self.C("online softmax: running max (true max), rescale only when it grew")
        A(f"v_max3_f32 v{t}, v{S}, v{S+1}, v{S+2}")
        A(f"v_max3_f32 v{t}, v{t}, v{S+3}, v{S+4}")
        A(f"v_max3_f32 v{t}, v{t}, v{S+5}, v{S+6}")
        A(f"v_max_f32 v{t}, v{t}, v{S+7}")
        self.xlane("v_max_f32", t, u)
        skip = self.newlabel("L_norescale")
        A(f"v_cmp_gt_f32 vcc, v{t}, v{self.vM}")
        A(f"s_and_b64 s[{self.sE}:{self.sE+1}], vcc, s[{self.sMASK}:{self.sMASK+1}]")
        A(f"s_cbranch_scc0 {skip}")
        A(f"v_max_f32 v{t}, v{t}, v{self.vM}")
        A(f"v_sub_f32 v{u}, v{self.vM}, v{t}")
        A(f"v_mul_f32 v{u}, s{self.sC}, v{u}")
        A(f"v_exp_f32 v{u}, v{u}")
        A(f"v_mov_b32 v{self.vM}, v{t}")
        for k in range(32): A(f"v_mul_f32 v{self.vO+k}, v{u}, v{self.vO+k}")
        for k in range(4): A(f"v_mul_f32 v{self.vCR+k}, v{u}, v{self.vCR+k}")
        A(f"v_mul_f32 v{self.vLs}, v{u}, v{self.vLs}")
        self.label(skip)
        A(f"v_mul_f32 v{t}, s{self.sNC}, v{self.vM}")
        for j in range(8): A(f"v_fma_f32 v{S+j}, v{S+j}, s{self.sC}, v{t}")
        for j in range(8): A(f"v_exp_f32 v{S+j}, v{S+j}")
        n = wait_for("SZ")
        if pf:
            A(f"s_waitcnt vmcnt({n})")
        else:
            lb = self.newlabel("L_w3")
            A(f"s_waitcnt vmcnt({n+7})")
            A(f"s_cmp_eq_u32 s{self.sW}, {self.dw}")
            A(f"s_cbranch_scc1 {lb}")
            A(f"s_waitcnt vmcnt({n})")
            self.label(lb)
        VF = self.vVF
        for k in range(4):
            A(f"v_lshlrev_b32 v{VF+2*k}, 16, v{self.vVS+k}")
            A(f"v_and_b32 v{VF+2*k+1}, 0xffff0000, v{self.vVS+k}")
        for j in range(8): A(f"v_add_f32 v{self.vLs}, v{self.vLs}, v{S+j}")
        for j in range(8): A(f"v_mul_f32 v{S+j}, v{S+j}, v{VF+j}")
        for a in range(4): A(f"v_cvt_pk_bf16_f32 v{self.vPB+a}, v{S+2*a}, v{S+2*a+1}")
        A("s_nop 1")
        self.mfma(self.vCR, self.vVZ, self.vPB, self.vCR)
        if pf:
            self.ld_sz(); q.append(("nSZ",8))
        else:
            self.xlane("v_add_f32", self.vLs, T)
            A("s_nop 1")
            self.dpp_hi(self.vM, self.vM); self.dpp_hi(self.vLs, self.vLs)
            for r in range(4): self.dpp_hi(self.vCR+r, self.vCR+r)
        TP = self.vTP
        for h in range(2):
            n = wait_for(f"V{h}")
            self.C(f"V tiles {2*h},{2*h+1}: int32 -> bf16" + (", O^T += V^T * (p*vs)^T" if h else ""))
            def ticket():
                self.C("all data of this wave has arrived: take the merge ticket, read the merge state early")
                A(f"v_mov_b32 v{self.vTK}, 1")
                A("s_mov_b64 exec, 1")
                A(f"ds_add_rtn_u32 v{self.vTK}, v{self.vZ}, v{self.vTK} offset:{self.CTL}")
                A("s_mov_b64 exec, -1")
                self.rd_slots()
            if pf:
                A(f"s_waitcnt vmcnt({n})")
            else:
                lb = self.newlabel("L_w3")
                A(f"s_waitcnt vmcnt({n+7})", "wave 3 has 7 younger speculative loads in flight")
                A(f"s_cmp_eq_u32 s{self.sW}, {self.dw}")
                A(f"s_cbranch_scc1 {lb}")
                A(f"s_waitcnt vmcnt({n})")
                if h == 1: ticket()
                self.label(lb)
            u = h
            R = self.vRV + u*32
            for k in range(32): A(f"v_cvt_f32_i32 v{R+k}, v{R+k}")
            def pk(hc):
                hh, c = hc >> 2, hc & 3
                for a2 in range(2):
                    A(f"v_cvt_pk_bf16_f32 v{self.OPV[hc]+2*u+a2}, v{R+(a2*4+hh)*4+c}, v{R+(a2*4+2+hh)*4+c}")
            def mf(hc):
                o = self.vO + hc*4
                self.mfma(o, self.OPV[hc], self.vPB, o)
            if u == 0:
                for hc in range(8): pk(hc)
            else:
                pk(0); pk(1)
                for hc in range(6):
                    mf(hc); pk(hc+2)
                mf(6); A("s_nop 0"); mf(7)
            if not pf and h == 1:
                A(f"s_cmp_lg_u32 s{self.sW}, {self.dw}")
                A("s_cbranch_scc1 L_w3done")
                A("s_waitcnt vmcnt(0) lgkmcnt(0)")
                self.pw_valid(254)
                A("s_cbranch_scc0 L_nodep")
                self.C("pair word valid: every granule must carry the same stamp, else it was read too early")
                for k in range(6):
                    A(f"v_cmp_ne_u32 vcc, v254, v{self.G[k]+3}")
                    A(f"s_or_b64 s[{self.sE}:{self.sE+1}], vcc, " + ("vcc" if k == 0 else f"s[{self.sE}:{self.sE+1}]"))
                A("s_cbranch_scc1 L_nodep")
                A(f"v_mov_b32 v{self.vTK}, 1")
                for k in range(6):
                    A(f"ds_write_b128 v{self.vLT}, v[{self.G[k]}:{self.G[k]+3}] offset:{self.SP+k*1024}")
                A(f"ds_write_b32 v{self.vZ}, v{self.vTK} offset:{self.CTL+8}", "partner-ready = 1 (LDS ops of a wave are ordered)")
                self.label("L_nodep")
                ticket()
                self.label("L_w3done")
            if pf:
                self.ld_v(h); q.append((f"nV{h}",8))

    def pair_consts(self):
        A = self.A
        A(f"s_lshl_b32 s{self.sMS}, s{self.sBH}, 1")
        A(f"s_add_u32 s{self.sMS}, s{self.sMS}, s{self.sHALF}")
        A(f"s_lshl_b32 s{self.sMS}, s{self.sMS}, 13", "my d_ws slot")
        A(f"s_xor_b32 s{self.sPS}, s{self.sMS}, 0x2000", "partner slot")
        A(f"s_lshl_b32 s{self.sPW}, s{self.sBH}, 14")
        A(f"s_add_u32 s{self.sPW}, s{self.sPW}, {self.PWOFF}", "pair word")
        A(f"s_lshl_b32 s{self.sMY}, s{self.sHALF}, 30")
        A(f"s_or_b32 s{self.sMY}, s{self.sMY}, 0x80000000", "tag bits of my pair-word value")
        A(f"s_xor_b32 s{self.sPB}, s{self.sMY}, 0x40000000", "tag bits of the partner's value")

    def lane_consts(self):
        A = self.A; T = self.vT
        A(f"v_mov_b32 v{self.vZ}, 0")
        A(f"v_and_b32 v{T+1}, 7, v{self.vLANE}")
        A(f"v_lshlrev_b32 v{self.vQ8}, 3, v{T+1}", "q*8")
        A(f"v_add_u32 v{self.vGS}, 4096, v{self.vLT}", "lane*16 + 4096")

    def endgame_setup(self):
        A = self.A; T = self.vT
        self.C("merge-phase addresses (the stream address registers are dead from here on)")
        self.srd(self.sWS, 22, 256*8192, "d_ws")
        self.srd(self.sOUT, 18, 8*32*4*128*2, "d_out")
        self.pair_consts()
        A(f"s_lshl_b32 s{self.sOB}, s{self.sBH}, 11", "output block")
        self.lane_consts()
        A(f"v_lshrrev_b32 v{T+2}, 4, v{self.vLANE}")
        A(f"v_bfe_u32 v{T+3}, v{self.vLANE}, 3, 1")
        A(f"v_lshlrev_b32 v{self.vOUT}, 8, v{T+1}")
        A(f"v_lshl_add_u32 v{self.vOUT}, v{T+2}, 5, v{self.vOUT}")
        A(f"v_lshl_add_u32 v{self.vOUT}, v{T+3}, 7, v{self.vOUT}", "q*256 + h*128 + g*32")

    def pw_valid(self, v):
        A = self.A; E = self.sE; N = self.sNOW
        A(f"v_readfirstlane_b32 s{E}, v{v}")
        A(f"v_readfirstlane_b32 s{E+1}, v{v+1}")
        A(f"s_xor_b32 s{E+1}, s{E+1}, s{self.sPB}")
        A(f"s_sub_u32 s{E}, s{N}, s{E}")
        A(f"s_subb_u32 s{E+1}, s{N+1}, s{E+1}")
        A(f"s_add_u32 s{E}, s{E}, 0x1000000")
        A(f"s_addc_u32 s{E+1}, s{E+1}, 0")
        A(f"s_lshr_b32 s{E}, s{E}, 27")
        A(f"s_or_b32 s{E}, s{E}, s{E+1}")
        A(f"s_cmp_eq_u32 s{E}, 0")

    def pw_clear(self):
        A = self.A; T = self.vT
        A(f"v_mov_b32 v{T}, 0"); A(f"v_mov_b32 v{T+1}, 0")
        A("s_mov_b64 exec, 1")
        A(f"buffer_store_dwordx2 v[{T}:{T+1}], v{self.vZ}, s[{self.sWS}:{self.sWS+3}], s{self.sPW} offen sc0 sc1", "hand-off consumed: clear the pair word")
        A("s_mov_b64 exec, -1")

    def tags_differ(self, vtag, G):
        for k in range(6):
            self.A(f"v_cmp_ne_u32 vcc, v{vtag}, v{G[k]+3}")
            self.A(f"s_or_b64 s[{self.sE}:{self.sE+1}], vcc, " + ("vcc" if k == 0 else f"s[{self.sE}:{self.sE+1}]"))

    def gl_partial(self, op, slot, G=None):
        G = G or self.G
        for k in range(6):
            o = f"offset:{k*1024}" if k < 4 else f"offset:{(k-4)*1024}"
            va = self.vLT if k < 4 else self.vGS
            self.A(f"buffer_{op}_dwordx4 v[{G[k]}:{G[k]+3}], v{va}, s[{self.sWS}:{self.sWS+3}], s{slot} offen {o} sc0 sc1")

    def factors(self, ms, fs, M):
        A = self.A
        A(f"v_max_f32 v{M}, v{ms[0]}, v{ms[1]}")
        for m in ms[2:]: A(f"v_max_f32 v{M}, v{M}, v{m}")
        for m, f in zip(ms, fs): A(f"v_sub_f32 v{f}, v{m}, v{M}")
        for f in fs: A(f"v_mul_f32 v{f}, s{self.sC}, v{f}")
        for f in fs: A(f"v_exp_f32 v{f}, v{f}")
        A("s_nop 0")

    def store_out(self, X):
        A = self.A; W = self.vQB + 8
        for r in range(4):
            for cp in range(2):
                A(f"v_cvt_pk_bf16_f32 v{W+r*2+cp}, v{X+(2*cp)*4+r}, v{X+(2*cp+1)*4+r}")
        for k in range(2):
            A(f"buffer_store_dwordx4 v[{W+k*4}:{W+k*4+3}], v{self.vOUT}, s[{self.sOUT}:{self.sOUT+3}], s{self.sOB} offen offset:{k*16} {self.ofl}".rstrip())

    def merge(self, partner):
        A = self.A; T = self.vT
        O, CR, vA, ST = self.vO, self.vCR, self.vA, self.vST
        F = self.vS; NC = self.vVF
        M, Lr = (T+4, T+5) if partner else (self.pl(16), self.pl(17))
        ms = [self.vM] + [ST+2*w for w in range(3)] + ([self.pl(16)] if partner else [])
        ls = [self.vLs] + [ST+2*w+1 for w in range(3)] + ([self.pl(17)] if partner else [])
        n = len(ms)
        self.factors(ms, [F+k for k in range(n)], M)
        A(f"v_mul_f32 v{Lr}, v{F}, v{ls[0]}")
        for k in range(1, n): A(f"v_fmac_f32 v{Lr}, v{F+k}, v{ls[k]}")
        if partner:
            A(f"v_rcp_f32 v{T+6}, v{Lr}")
            A("s_nop 0")
            for k in range(n): A(f"v_mul_f32 v{F+k}, v{F+k}, v{T+6}")
        for r in range(4): A(f"v_mul_f32 v{NC+r}, v{F}, v{CR+r}")
        for i in range(16): A(f"v_fma_f32 v{O+i}, v{F}, v{O+i}, -v{NC+(i&3)}")
        for w in range(2):
            for i in range(16): A(f"v_fmac_f32 v{O+i}, v{F+1+w}, v{vA+w*16+i}")
        if partner:
            for i in range(16): A(f"v_fmac_f32 v{O+i}, v{F+3}, v{vA+32+i}")
            for i in range(16): A(f"v_fmac_f32 v{O+i}, v{F+4}, v{self.pl(i)}")
        else:
            for i in range(16): A(f"v_fma_f32 v{self.pl(i)}, v{F+3}, v{vA+32+i}, v{O+i}")

    def endgame(self):
        A = self.A; T = self.vT
        O, CR, vA, ST = self.vO, self.vCR, self.vA, self.vST
        F = self.vS; M, Lr = T+4, T+5
        sTK, sDN, sRDY, sOK = self.sX, self.sY, self.sZ, self.sE
        A("s_waitcnt lgkmcnt(0)")
        A(f"v_readfirstlane_b32 s{sTK}, v{self.vTK}")
        A("s_nop 7", "MFMA results -> VALU")
        self.C("spread the partial over all lanes: lane (q+8h, g) keeps the 16 values of d-half h")
        for i in range(16): self.dpp_hi(O+i, O+16+i)
        self.st(4)
        A(f"s_cmp_eq_u32 s{sTK}, 3")
        A("s_cbranch_scc1 L_last")
        self.C("early arriver: deposit O-corr, m, l in LDS slot [ticket]")
        for i in range(16): A(f"v_sub_f32 v{O+i}, v{O+i}, v{CR+(i&3)}")
        A(f"s_lshl_b32 s{sDN}, s{sTK}, 12")
        A(f"v_add_u32 v{T}, s{sDN}, v{self.vLT}")
        A(f"s_lshl_b32 s{sDN}, s{sTK}, 6")
        A(f"v_add_u32 v{T+1}, s{sDN}, v{self.vQ8}")
        A(f"v_mov_b32 v{T+2}, 1")
        for j in range(4):
            A(f"ds_write_b128 v{T}, v[{O+4*j}:{O+4*j+3}] offset:{self.SL+j*1024}")
        A(f"ds_write_b64 v{T+1}, v[{self.vM}:{self.vLs}] offset:{self.SS}")
        A("s_waitcnt lgkmcnt(0)")
        A("s_mov_b64 exec, 1")
        A(f"ds_add_u32 v{self.vZ}, v{T+2} offset:{self.CTL+4}", "done++")
        A("s_branch L_exit")
        self.label("L_respin")
        self.rd_slots()
        A("s_waitcnt lgkmcnt(0)")
        self.label("L_last")
        A(f"v_readfirstlane_b32 s{sDN}, v{ST+9}")
        A(f"v_readfirstlane_b32 s{sRDY}, v{ST+10}")
        A(f"s_cmp_eq_u32 s{sDN}, 3", "the other three waves took their tickets earlier and are depositing")
        A("s_cbranch_scc0 L_respin")
        A(f"s_cmp_eq_u32 s{sRDY}, 0")
        A("s_cbranch_scc1 L_slow")
        self.mark(1)
        self.C("fast path: own + 3 waves + partner workgroup, normalise, store")
        self.pw_clear()
        self.merge(True)
        self.store_out(O)
        A("s_branch L_fin")
        self.label("L_slow")
        self.mark(2)
        G2 = self.G2
        A(f"s_memrealtime s[{self.sNOW}:{self.sNOW+1}]")
        self.merge(False)
        A("s_waitcnt lgkmcnt(0)")
        for k in range(6): A(f"v_mov_b32 v{self.G[k]+3}, s{self.sNOW}")
        A(f"s_or_b32 s{self.sE}, s{self.sNOW+1}, s{self.sMY}")
        A(f"v_mov_b32 v{T}, s{self.sNOW}")
        A(f"v_mov_b32 v{T+1}, s{self.sE}")
        self.C("publish the tagged partial, swap my stamp into the pair word, and read the partner's slot, all at once;")
        self.C("whoever finds the other's stamp merges; the tags tell whether the partner's stores had landed")
        self.gl_partial("store", self.sMS)
        A("s_mov_b64 exec, 1")
        A(f"buffer_atomic_swap_x2 v[{T}:{T+1}], v{self.vZ}, s[{self.sWS}:{self.sWS+3}], s{self.sPW} offen sc0 sc1")
        A("s_mov_b64 exec, -1")
        self.gl_partial("load", self.sPS, G2)
        A("s_waitcnt vmcnt(6)")
        A(f"v_readfirstlane_b32 s{self.sX}, v{T}")
        self.pw_valid(T)
        A("s_cbranch_scc0 L_exit")
        A(f"v_mov_b32 v{T+2}, s{self.sX}")
        self.pw_clear()
        A("s_waitcnt vmcnt(1)")
        self.label("L_retag")
        self.tags_differ(T+2, G2)
        A("s_cbranch_scc0 L_merge")
        self.mark(3)
        self.gl_partial("load", self.sPS, G2)
        A("s_waitcnt vmcnt(0)")
        A("s_branch L_retag")
        self.label("L_merge")
        M, Lr = self.pl(16), self.pl(17)
        self.factors([M, self.pl(16, G2)], [F, F+1], F+2)
        A(f"v_mul_f32 v{Lr}, v{F}, v{Lr}")
        A(f"v_fmac_f32 v{Lr}, v{F+1}, v{self.pl(17, G2)}")
        A(f"v_rcp_f32 v{Lr}, v{Lr}")
        A("s_nop 0")
        for k in range(2): A(f"v_mul_f32 v{F+k}, v{F+k}, v{Lr}")
        for i in range(16): A(f"v_mul_f32 v{O+i}, v{F}, v{self.pl(i)}")
        for i in range(16): A(f"v_fmac_f32 v{O+i}, v{F+1}, v{self.pl(i, G2)}")
        self.store_out(O)
        self.label("L_fin")

    def build(self):
        A = self.A; T = self.vT
        P = self.L.append
        P(HEADER.rstrip("\n"))
        P(f"; @launch grid=(256,1,1) block=(256,1,1) lds={max(self.LDS, self.ldsmin)}")
        P('.amdgcn_target "amdgcn-amd-amdhsa--gfx950"')
        P(".text"); P(f".globl {KNAME}"); P(".p2align 8"); P(f".type {KNAME},@function"); P(f"{KNAME}:")
        A("s_cmp_ge_u32 s2, 256", "extra workgroups exit")
        A("s_cbranch_scc1 L_end")
        A("s_load_dwordx16 s[4:19], s[0:1], 0", "q qk qv ks kz vs vz out")
        A("s_load_dwordx4 s[20:23], s[0:1], 64", "debug ws")
        self.st(0)
        if self.stamp:
            for k in range(1,7): A(f"s_mov_b32 s{80+2*k}, 0")
        A(f"v_lshrrev_b32 v{T}, 6, v0")
        A(f"v_and_b32 v{self.vLANE}, 63, v0")
        if self.far:
            A(f"s_and_b32 s{self.sBH}, s2, 127"); A(f"s_lshr_b32 s{self.sHALF}, s2, 7")
        else:
            A(f"s_lshr_b32 s{self.sBH}, s2, 1", "(b,hkv)")
            A(f"s_and_b32 s{self.sHALF}, s2, 1")
        A(f"v_readfirstlane_b32 s{self.sW}, v{T}", "wave id")
        n_, g_ = T+1, T+2
        A(f"v_and_b32 v{n_}, 15, v{self.vLANE}")
        A(f"v_lshrrev_b32 v{g_}, 4, v{self.vLANE}")
        self.C("K lane offset: row (8*(m>>2) + ((m>>1)&1)), byte (m&1)*64 + g*16")
        A(f"v_lshrrev_b32 v{T+3}, 2, v{n_}")
        A(f"v_lshlrev_b32 v{self.vOK}, 12, v{T+3}")
        A(f"v_bfe_u32 v{T+3}, v{n_}, 1, 1")
        A(f"v_lshl_add_u32 v{self.vOK}, v{T+3}, 9, v{self.vOK}")
        A(f"v_and_b32 v{T+3}, 1, v{n_}")
        A(f"v_lshl_add_u32 v{self.vOK}, v{T+3}, 6, v{self.vOK}")
        A(f"v_lshl_add_u32 v{self.vOK}, v{g_}, 4, v{self.vOK}")
        A(f"v_lshlrev_b32 v{T+4}, 5, v{T+3}")
        A(f"v_lshl_add_u32 v{T+4}, v{g_}, 3, v{T+4}", "kz (A layout): (n&1)*32 + g*8")
        A(f"v_lshrrev_b32 v{T+3}, 3, v{n_}")
        A(f"v_lshlrev_b32 v{T+5}, 5, v{T+3}")
        A(f"v_lshl_add_u32 v{T+5}, v{g_}, 3, v{T+5}", "ks (B layout): (n>>3)*32 + g*8")
        A(f"v_and_b32 v{T+3}, 7, v{n_}")
        A(f"v_lshl_add_u32 v{T+6}, v{T+3}, 8, v{T+5}", "q (B layout): + (n&7)*256")
        A(f"v_lshlrev_b32 v{self.vOV}, 12, v{g_}")
        A(f"v_lshl_add_u32 v{self.vOV}, v{n_}, 4, v{self.vOV}", "V lane offset: row 8g, byte n*16")
        A(f"v_lshlrev_b32 v{self.vOS}, 4, v{g_}")
        A(f"v_lshlrev_b32 v{self.vLT}, 4, v{self.vLANE}")
        A(f"s_mov_b32 s{self.sMASK}, 0x00ff00ff", "lanes that carry a query row")
        A(f"s_mov_b32 s{self.sMASK+1}, 0x00ff00ff")
        A(f"s_mov_b32 s{self.sC}, {f32hex(C_SCALE)}")
        A(f"s_mov_b32 s{self.sNC}, {f32hex(-C_SCALE)}")
        A(f"s_lshl_b32 s{self.sOFF}, s{self.sBH}, 20")
        A(f"s_lshl_b32 s{self.sX}, s{self.sHALF}, 16")
        A(f"s_add_u32 s{self.sOFF}, s{self.sOFF}, s{self.sX}")
        A(f"s_lshl_b32 s{self.sX}, s{self.sW}, 10")
        A(f"s_add_u32 s{self.sOFF}, s{self.sOFF}, s{self.sX}", "(b,hkv) base + half*64K + wave*1K")
        if self.rot: A(f"s_bfe_u32 s{self.sSTEP}, s2, 0x30003", "start round (wg>>3)&7")
        else: A(f"s_mov_b32 s{self.sSTEP}, 0")
        A("s_waitcnt lgkmcnt(0)")
        if self.stamp == 1: self.st(1)
        NB = self.nb
        GPW = 8 // NB
        self.srd(self.sK, 6, 0x8000000, "qk")
        self.set_step_offsets()
        if NB < 4:
            A(f"s_cmp_lt_u32 s{self.sW}, {NB}")
            A("s_cbranch_scc1 L_builder")
            self.C("streaming-only waves: request the whole first step at once")
            for a in range(4): self.ld_k(a)
            self.srd(self.sV, 8, 0x8000000, "qv")
            self.srd(self.sVS, 14, 8*16*2048*2, "v_scales")
            self.srd(self.sVZ, 16, 8*16*2048*2, "v_zeros")
            self.ld_sz(); self.ld_v(0); self.ld_v(1)
            A("s_branch L_built")
            self.label("L_builder")
        self.srd(self.sWS, 4, 8*32*4*128*2, "q (temporary use of this descriptor)")
        A(f"s_lshl_b32 s{self.sX}, s{self.sBH}, 11")
        for i in range(4):
            A(f"buffer_load_dwordx2 v[{16+2*i}:{17+2*i}], v{T+6}, s[{self.sWS}:{self.sWS+3}], s{self.sX} offen offset:{64*i}")
        A(f"s_mul_i32 s{self.sY}, s{self.sW}, {2*GPW}")
        A(f"s_add_u32 s{self.sY}, s{self.sY}, s{self.sHALF}", "table rounds w*GPW..: group = 2*round + half")
        A(f"s_lshl_b32 s{self.sX}, s{self.sBH}, 12")
        A(f"s_lshl_b32 s{self.sY}, s{self.sY}, 8")
        A(f"s_add_u32 s{self.sX}, s{self.sX}, s{self.sY}")
        self.srd(self.sDBG, 10, 8*16*16*128*2, "k_scales (temporary)")
        self.srd(self.sOUT, 12, 8*16*16*128*2, "k_zeros (temporary)")
        KSZ = 52
        for gi in range(GPW):
            for i in range(4):
                r = KSZ + gi*16 + 2*i
                A(f"buffer_load_dwordx2 v[{r}:{r+1}], v{T+5}, s[{self.sDBG}:{self.sDBG+3}], s{self.sX} offen offset:{gi*512+64*i}")
            for i in range(4):
                r = KSZ + gi*16 + 8 + 2*i
                A(f"buffer_load_dwordx2 v[{r}:{r+1}], v{T+4}, s[{self.sOUT}:{self.sOUT+3}], s{self.sX} offen offset:{gi*512+64*i}")
        if self.kfirst:
            for a in range(4): self.ld_k(a)
        self.srd(self.sV, 8, 0x8000000, "qv")
        self.srd(self.sVS, 14, 8*16*2048*2, "v_scales")
        self.srd(self.sVZ, 16, 8*16*2048*2, "v_zeros")
        pend = [16 if self.kfirst else 0]
        save = self.L; self.L = []
        if not self.kfirst:
            for a in range(4): self.ld_k(a)
        self.ld_sz(); self.ld_v(0); self.ld_v(1)
        defer = self.L; self.L = save
        cnt = [0]
        def B(x):
            self.A(x); cnt[0] += 1
            if defer and cnt[0] % self.gap == 0:
                self.L.append(defer.pop(0)); pend[0] += 1
        self.C("table build: B operands bf16(q*ks) hi/lo and C0 = -(q*ks).kz")
        self.A(f"s_waitcnt vmcnt({pend[0] + GPW*8})")
        QF = 36
        for k in range(8):
            B(f"v_lshlrev_b32 v{QF+2*k}, 16, v{16+k}")
            B(f"v_and_b32 v{QF+2*k+1}, 0xffff0000, v{16+k}")
        self.A(f"s_mul_i32 s{self.sZ}, s{self.sW}, {GPW*5120}")
        self.A(f"v_add_u32 v{T+7}, s{self.sZ}, v{self.vLT}")
        QB = self.vQB
        for gi in range(GPW):
            self.A(f"s_waitcnt vmcnt({pend[0] + (GPW-1-gi)*8})")
            KS = KSZ + gi*16; KZ = KS + 8
            for k in range(8):
                t0, t1, t2, t3 = T, T+1, T+2, T+3
                B(f"v_lshlrev_b32 v{t0}, 16, v{KS+k}")
                B(f"v_and_b32 v{t1}, 0xffff0000, v{KS+k}")
                B(f"v_mul_f32 v{t0}, v{t0}, v{QF+2*k}")
                B(f"v_mul_f32 v{t1}, v{t1}, v{QF+2*k+1}")
                B(f"v_cvt_pk_bf16_f32 v{QB+k}, v{t0}, v{t1}")
                B(f"v_lshlrev_b32 v{t2}, 16, v{QB+k}")
                B(f"v_and_b32 v{t3}, 0xffff0000, v{QB+k}")
                B(f"v_sub_f32 v{t0}, v{t0}, v{t2}")
                B(f"v_sub_f32 v{t1}, v{t1}, v{t3}")
                B(f"v_cvt_pk_bf16_f32 v{QB+8+k}, v{t0}, v{t1}")
            for k in range(8):
                B(f"v_xor_b32 v{KZ+k}, 0x80008000, v{KZ+k}")
            self.A("s_nop 1")
            C0 = QB+16
            self.mfma(C0, KZ, QB, None)
            self.mfma(C0, KZ+4, QB+4, C0)
            self.mfma(C0, KZ, QB+8, C0)
            self.mfma(C0, KZ+4, QB+12, C0)
            for it in range(4):
                self.A(f"ds_write_b128 v{T+7}, v[{QB+it*4}:{QB+it*4+3}] offset:{gi*5120+it*1024}")
            self.A("s_nop 7")
            self.A(f"ds_write_b128 v{T+7}, v[{C0}:{C0+3}] offset:{gi*5120+4096}")
            if gi + 1 < GPW: self.A("s_waitcnt lgkmcnt(0)")
        if NB < 4: self.label("L_built")
        A = self.A
        for k in range(4): A(f"v_mov_b32 v{T+k}, 0")
        A(f"ds_write_b128 v{T}, v[{T}:{T+3}] offset:{self.CTL}", "ticket, done, partner-ready = 0")
        for k in range(32): A(f"v_mov_b32 v{self.vO+k}, 0")
        for k in range(4): A(f"v_mov_b32 v{self.vCR+k}, 0")
        A(f"v_mov_b32 v{self.vM}, 0xff800000")
        A(f"v_mov_b32 v{self.vLs}, 0")
        A("s_waitcnt lgkmcnt(0)")
        A("s_barrier")
        self.st(2)
        self.ld_qb()
        if defer:
            if NB < 4:
                A(f"s_cmp_ge_u32 s{self.sW}, {NB}")
                A("s_cbranch_scc1 L_nodefer")
            self.L.extend(defer)
            if NB < 4: self.label("L_nodefer")
        A(f"s_mov_b32 s{self.sCNT}, 7")
        self.label("L_loop")
        A(f"s_add_u32 s{self.sSTEP}, s{self.sSTEP}, 1")
        A(f"s_and_b32 s{self.sSTEP}, s{self.sSTEP}, 7")
        self.set_step_offsets()
        self.step(True)
        A(f"s_sub_u32 s{self.sCNT}, s{self.sCNT}, 1")
        A(f"s_cmp_lg_u32 s{self.sCNT}, 0")
        A("s_cbranch_scc1 L_loop")
        self.endgame_setup()
        self.step(False)
        self.st(3)
        self.endgame()
        if self.stamp:
            A("s_waitcnt vmcnt(0)")
            self.st(6)
            self.label("L_exit")
            self.st_dump()
        else:
            self.label("L_exit")
        self.label("L_end")
        A("s_endpgm")
        P = self.L.append
        P('.section .rodata,"a"'); P(".p2align 6"); P(f".amdhsa_kernel {KNAME}")
        P(f"  .amdhsa_next_free_vgpr {self.NV}")
        P(f"  .amdhsa_next_free_sgpr {100 if self.stamp else 80}")
        P(f"  .amdhsa_accum_offset {self.NV}")
        P("  .amdhsa_group_segment_fixed_size 0")
        P("  .amdhsa_kernarg_size 80")
        P("  .amdhsa_user_sgpr_count 2")
        P("  .amdhsa_user_sgpr_kernarg_segment_ptr 1")
        P("  .amdhsa_system_sgpr_workgroup_id_x 1")
        P("  .amdhsa_float_denorm_mode_32 3")
        P(".end_amdhsa_kernel")
        return "\n".join(self.L) + "\n"

if __name__ == "__main__":
    out = sys.argv[1]
    kw = {}
    for a in sys.argv[2:]:
        k, v = a.split("=")
        kw[k] = int(v) if v.lstrip("-").isdigit() else v
    open(out, "w").write(Gen(**kw).build())
```

```python
import struct, sys

KNAME = "standalone__kv_cache_quant_int4_int2_kv_with_per_channel_or_per_token_scales__sampling_kernel"
HEADER = open("standalone__kv_cache_quant_int4_int2_kv_with_per_channel_or_per_token_scales__sampling.s.ref").read().split("; Override launch")[0]

def f32hex(x):
    return "0x%08x" % struct.unpack("<I", struct.pack("<f", x))[0]

C_SCALE = (128.0 ** -0.5) * 1.4426950408889634

class Gen:
    def __init__(self, stamp=0, rot=1, gap=10, poll="loop", fl="nt", psleep=4, early=1, dw=3, nb=4, kfirst=1, far=0, ldsmin=0, ofl="", thr=5, gk=8, gv=11, npre=8, kpre=0, cpf=0, n0=6, pthr=5, touch=0, kfront=0, keep=8):
        self.stamp = stamp; self.rot = rot; self.gap = gap; self.poll = poll; self.fl = fl; self.psleep = psleep; self.early = early; self.dw = dw; self.nb = nb; self.kfirst = kfirst; self.far = far; self.ldsmin = ldsmin; self.ofl = ofl.replace("_", " "); self.thr = thr; self.gk = gk; self.gv = gv; self.npre = npre; self.kpre = kpre; self.cpf = cpf; self.n0 = n0; self.pthr = pthr; self.touch = touch; self.kfront = kfront; self.keep = keep; self.gi = gk
        self.L = []; self.lbl = 0; self.pq = None; self.hold = False; self.since = 0; self.seq = []; self.nload = 0; self.done6 = False

    def A(self, s, c=None):
        self.L.append("  " + s + (f"    ; {c}" if c else ""))
        if self.pq is not None and not self.hold:
            self.since += 1
            if self.pq and self.since >= self.gi: self.emit_one()
    def emit_one(self):
        tag, line = self.pq.pop(0)
        if self.thr:
            pat = str(self.thr); t = int(pat[self.nload % len(pat)]); self.nload += 1
            self.L.append(f"  s_waitcnt vmcnt({t-1})")
        self.L.append(line); self.seq.append(tag); self.since = 0
    def push_loads(self, tag, fn):
        save, pq = self.L, self.pq
        self.L, self.pq = [], None
        fn()
        lines, self.L, self.pq = self.L, save, pq
        for ln in lines: self.pq.append((tag, ln))
    def C(self, c):
        self.L.append(f"  ; {c}")
    def label(self, s):
        self.L.append(s + ":")
    def newlabel(self, p="L"):
        self.lbl += 1
        return f"{p}_{self.lbl}"

    vLANE = 1; vOK = 2; vOV = 3; vOS = 4; vLT = 5
    vT = 6
    vM = 14; vLs = 15
    vQB = 16
    vD = 36
    vS = 52
    vVF = 60
    vPB = 68
    vTP = 72
    OPV = [36, 40, 44, 48, 60, 64, 72, 76]
    vO = 80
    vCR = 112
    vVS = 116; vVZ = 120
    vRK = 124
    vRV = 188
    vQ8 = 2; vZ = 3; vGS = 4; vOUT = 252; vTK = 253
    vA = 124
    vST = 24
    NV = 256
    sK = 24; sV = 28; sVS = 32; sVZ = 36
    sWS = 40; sDBG = 64; sOUT = 68
    sMASK = 44
    sC = 46; sNC = 47
    sW = 48; sBH = 49; sHALF = 50
    sOFF = 51; sOFS = 52; sCNT = 53; sSTEP = 54
    sX = 55; sY = 56; sZ = 57; sE = 58
    sLQ = 60
    sTA = 76
    sPW = 61; sMY = 62; sPB = 63; sMS = 72; sPS = 73; sOB = 74; sNOW = 64
    ENT = 5632
    SL = 8*ENT; SP = SL + 3*4096; SS = SP + 6*1024; CTL = SS + 3*64; LDS = CTL + 16
    G = [172, 176, 180, 184, 16, 20]
    G2 = [188, 192, 196, 200, 204, 208]
    def pl(self, p, G=None): return (G or self.G)[p//3] + p % 3
    PWOFF = 7168

    def st(self, k, late=False):
        if self.stamp == 6 and self.done6: return
        if self.stamp: self.A(f"s_memrealtime s[{80+2*k}:{81+2*k}]")
    def mark(self, x):
        if self.stamp == 8: self.A(f"s_mov_b32 s82, {x}")
    def st_dump(self):
        A = self.A
        A("s_mov_b64 exec, -1")
        A("s_getreg_b32 s96, hwreg(HW_REG_XCC_ID)")
        A("s_waitcnt lgkmcnt(0)")
        self.srd(24, 22, 0x1000000)
        A("s_lshl_b32 s97, s2, 2"); A(f"s_add_u32 s97, s97, s{self.sW}")
        A("s_lshl_b32 s97, s97, 6"); A("s_add_u32 s97, s97, 0x400000")
        for k in range(8):
            A(f"v_mov_b32 v{248+(k&3)}, s{80+2*k}" if k < 7 else f"v_mov_b32 v{248+(k&3)}, s96")
            if k & 3 == 3:
                A("v_mov_b32 v247, 0"); A("s_mov_b64 exec, 1")
                A(f"buffer_store_dwordx4 v[248:251], v247, s[24:27], s97 offen offset:{(k>>2)*16}")
                A("s_mov_b64 exec, -1"); A("s_nop 1")

    def srd(self, d, ptr, nbytes, c=None):
        self.A(f"s_mov_b32 s{d}, s{ptr}", c)
        self.A(f"s_and_b32 s{d+1}, s{ptr+1}, 0xffff")
        self.A(f"s_mov_b32 s{d+2}, {nbytes}")
        self.A(f"s_mov_b32 s{d+3}, 0x20000")

    def ld_k(self, a):
        for i in range(4):
            r = self.vRK + a*16 + i*4
            self.A(f"buffer_load_dwordx4 v[{r}:{r+3}], v{self.vOK}, s[{self.sK}:{self.sK+3}], s{self.sTA+a} offen offset:{i*128} {self.fl}")
    def rd_sz(self):
        self.A(f"v_add_u32 v{self.vT+3}, s{self.sLQ}, v{self.vOS}")
        for base, r in ((0, self.vVS), (64, self.vVZ)):
            self.A(f"ds_read2_b32 v[{r}:{r+1}], v{self.vT+3} offset0:{base} offset1:{base+16}", "v_scales: token pairs of tiles 0,1" if base == 0 else "v_zeros")
            self.A(f"ds_read2_b32 v[{r+2}:{r+3}], v{self.vT+3} offset0:{base+32} offset1:{base+48}")
    def ld_v(self, u):
        for j in range(8):
            a, b, h = 2*u + (j >> 2), (j >> 1) & 1, j & 1
            r = self.vRV + u*32 + j*4
            self.A(f"buffer_load_dwordx4 v[{r}:{r+3}], v{self.vOV}, s[{self.sV}:{self.sV+3}], s{self.sTA+a} offen offset:{b*512+h*256} {self.fl}")
    def ld_qb(self):
        self.A(f"v_add_u32 v{self.vT}, s{self.sLQ}, v{self.vLT}")
        for it in range(5):
            r = self.vQB + it*4
            self.A(f"ds_read_b128 v[{r}:{r+3}], v{self.vT} offset:{it*1024}")
    def set_step_offsets(self):
        self.A(f"s_lshl_b32 s{self.sTA}, s{self.sSTEP}, 17")
        self.A(f"s_add_u32 s{self.sTA}, s{self.sTA}, s{self.sOFF}", "K/V byte offset of tile 0")
        for a in range(1, 4):
            self.A(f"s_add_u32 s{self.sTA+a}, s{self.sTA}, {a*16384}")
        self.A(f"s_mul_i32 s{self.sLQ}, s{self.sSTEP}, {self.ENT}", "LDS table entry of the round")
    def xlane(self, op, x, t):
        self.A(f"v_mov_b32 v{t}, v{x}"); self.A("s_nop 1")
        self.A(f"v_permlane16_swap_b32 v{t}, v{x}")
        self.A(f"{op} v{x}, v{x}, v{t}")
        self.A(f"v_mov_b32 v{t}, v{x}"); self.A("s_nop 1")
        self.A(f"v_permlane32_swap_b32 v{t}, v{x}")
        self.A(f"{op} v{x}, v{x}, v{t}")
    def mfma(self, d, a, b, c):
        cs = "0" if c is None else f"v[{c}:{c+3}]"
        self.A(f"v_mfma_f32_16x16x32_bf16 v[{d}:{d+3}], v[{a}:{a+3}], v[{b}:{b+3}], {cs}")
    def dppadd(self, a):
        d = self.vD + a*4
        for b in range(2):
            self.A(f"v_add_f32_dpp v{self.vS+2*a+b}, v{d+2*b+1}, v{d+2*b} row_ror:8 row_mask:0xf bank_mask:0xf")

    def rd_slots(self):
        A = self.A
        A(f"ds_read_b128 v[{self.vST+8}:{self.vST+11}], v{self.vZ} offset:{self.CTL}", "ticket, done, partner-ready")
        for w in range(3):
            A(f"ds_read_b64 v[{self.vST+2*w}:{self.vST+2*w+1}], v{self.vQ8} offset:{self.SS+w*64}")
        for w in range(3):
            for j in range(4):
                r = self.vA + w*16 + j*4
                A(f"ds_read_b128 v[{r}:{r+3}], v{self.vLT} offset:{self.SL+w*4096+j*1024}")
        for k in range(6):
            A(f"ds_read_b128 v[{self.G[k]}:{self.G[k]+3}], v{self.vLT} offset:{self.SP+k*1024}")

    def dpp_hi(self, dst, src):
        self.A(f"v_mov_b32_dpp v{dst}, v{src} row_ror:8 row_mask:0xf bank_mask:0xc")

    def kphase(self, first):
        A = self.A
        QB = self.vQB
        Bhi0, Bhi1, Blo0, Blo1, C0 = QB, QB+4, QB+8, QB+12, QB+16
        self.seq = []; self.since = 0; self.gi = self.gk
        self.pq = []
        if first:
            self.pq = [("V", ln) for ln in self.rest]; pre = 16 - len(self.rest)
        else:
            pre = 0
            for u in range(2): self.push_loads(f"V{u}", lambda: self.ld_v(u))
        def wait_for(name):
            return (3 - int(name[1]))*4 + pre + len(self.seq)
        for a in range(4):
            n = wait_for(f"K{a}")
            self.C(f"K tile {a}: int32 -> bf16, S^T = K * (q*ks)^T (hi + lo), accumulator starts at -(q*ks).kz")
            A(f"s_waitcnt vmcnt({n}) lgkmcnt(0)" if a == 0 else f"s_waitcnt vmcnt({n})")
            if a == 0: self.rd_sz()
            R = self.vRK + a*16
            for k in range(16):
                A(f"v_cvt_f32_i32 v{R+k}, v{R+k}")
            for mm in range(2):
                for k in range(4):
                    A(f"v_cvt_pk_bf16_f32 v{R+mm*8+k}, v{R+mm*8+2*k}, v{R+mm*8+2*k+1}")
            if a > 0: self.dppadd(a-1)
            else: A("s_nop 1")
            D = self.vD + a*4
            self.mfma(D, R, Bhi0, C0)
            self.mfma(D, R+8, Bhi1, D)
            self.mfma(D, R, Blo0, D)
            self.mfma(D, R+8, Blo1, D)
        while self.pq: self.emit_one()
        self.pq = None

    def svphase(self, pf):
        A = self.A
        self.seq = []; self.since = 0; self.gi = self.gv
        def wait_for(name):
            return (1 - int(name[1]))*8 + len(self.seq)
        if pf:
            self.pq = []
            for a in range(4): self.push_loads(f"nK{a}", lambda: self.ld_k(a))
            self.ld_qb(); A("s_nop 1")
        else:
            self.C("wave 3: speculative read of the pair word and the partner's tagged partial (arrives with the last V data)")
            A(f"s_cmp_lg_u32 s{self.sW}, {self.dw}")
            A("s_cbranch_scc1 L_nospec")
            A(f"buffer_load_dwordx2 v[254:255], v{self.vZ}, s[{self.sWS}:{self.sWS+3}], s{self.sPW} offen sc0 sc1")
            self.gl_partial("load", self.sPS)
            A(f"s_memrealtime s[{self.sNOW}:{self.sNOW+1}]")
            self.label("L_nospec")
            A("s_nop 7")
        self.dppadd(3)
        S = self.vS; T = self.vT
        t, u = T+1, T+2
        self.C("online softmax: running max (true max), rescale only when it grew")
        A(f"v_max3_f32 v{t}, v{S}, v{S+1}, v{S+2}")
        A(f"v_max3_f32 v{t}, v{t}, v{S+3}, v{S+4}")
        A(f"v_max3_f32 v{t}, v{t}, v{S+5}, v{S+6}")
        A(f"v_max_f32 v{t}, v{t}, v{S+7}")
        self.xlane("v_max_f32", t, u)
        skip = self.newlabel("L_norescale")
        A(f"v_cmp_gt_f32 vcc, v{t}, v{self.vM}")
        A(f"s_and_b64 s[{self.sE}:{self.sE+1}], vcc, s[{self.sMASK}:{self.sMASK+1}]")
        self.hold = True
        A(f"s_cbranch_scc0 {skip}")
        A(f"v_max_f32 v{t}, v{t}, v{self.vM}")
        A(f"v_sub_f32 v{u}, v{self.vM}, v{t}")
        A(f"v_mul_f32 v{u}, s{self.sC}, v{u}")
        A(f"v_exp_f32 v{u}, v{u}")
        A(f"v_mov_b32 v{self.vM}, v{t}")
        for k in range(32): A(f"v_mul_f32 v{self.vO+k}, v{u}, v{self.vO+k}")
        for k in range(4): A(f"v_mul_f32 v{self.vCR+k}, v{u}, v{self.vCR+k}")
        A(f"v_mul_f32 v{self.vLs}, v{u}, v{self.vLs}")
        self.label(skip)
        self.hold = False
        A(f"v_mul_f32 v{t}, s{self.sNC}, v{self.vM}")
        for j in range(8): A(f"v_fma_f32 v{S+j}, v{S+j}, s{self.sC}, v{t}")
        for j in range(8): A(f"v_exp_f32 v{S+j}, v{S+j}")
        A("s_waitcnt lgkmcnt(5)" if pf else "s_waitcnt lgkmcnt(0)", "scales have arrived (the 5 younger table reads may still fly)")
        VF = self.vVF
        for k in range(4):
            A(f"v_lshlrev_b32 v{VF+2*k}, 16, v{self.vVS+k}")
            A(f"v_and_b32 v{VF+2*k+1}, 0xffff0000, v{self.vVS+k}")
        for j in range(8): A(f"v_add_f32 v{self.vLs}, v{self.vLs}, v{S+j}")
        for j in range(8): A(f"v_mul_f32 v{S+j}, v{S+j}, v{VF+j}")
        for a in range(4): A(f"v_cvt_pk_bf16_f32 v{self.vPB+a}, v{S+2*a}, v{S+2*a+1}")
        A("s_nop 1")
        self.mfma(self.vCR, self.vVZ, self.vPB, self.vCR)
        if not pf:
            self.xlane("v_add_f32", self.vLs, T)
            A("s_nop 1")
            self.dpp_hi(self.vM, self.vM); self.dpp_hi(self.vLs, self.vLs)
            for r in range(4): self.dpp_hi(self.vCR+r, self.vCR+r)
        TP = self.vTP
        for h in range(2):
            n = wait_for(f"V{h}")
            self.C(f"V tiles {2*h},{2*h+1}: int32 -> bf16" + (", O^T += V^T * (p*vs)^T" if h else ""))
            def ticket():
                self.C("all data of this wave has arrived: take the merge ticket, read the merge state early")
                A(f"v_mov_b32 v{self.vTK}, 1")
                A("s_mov_b64 exec, 1")
                A(f"ds_add_rtn_u32 v{self.vTK}, v{self.vZ}, v{self.vTK} offset:{self.CTL}")
                A("s_mov_b64 exec, -1")
                self.rd_slots()
            if pf:
                A(f"s_waitcnt vmcnt({n})")
            else:
                lb = self.newlabel("L_w3")
                A(f"s_waitcnt vmcnt({n+7})", "wave 3 has 7 younger speculative loads in flight")
                A(f"s_cmp_eq_u32 s{self.sW}, {self.dw}")
                A(f"s_cbranch_scc1 {lb}")
                A(f"s_waitcnt vmcnt({n})")
                if h == 1: ticket()
                self.label(lb)
            u = h
            R = self.vRV + u*32
            for k in range(32): A(f"v_cvt_f32_i32 v{R+k}, v{R+k}")
            def pk(hc):
                hh, c = hc >> 2, hc & 3
                for a2 in range(2):
                    A(f"v_cvt_pk_bf16_f32 v{self.OPV[hc]+2*u+a2}, v{R+(a2*4+hh)*4+c}, v{R+(a2*4+2+hh)*4+c}")
            def mf(hc):
                o = self.vO + hc*4
                self.mfma(o, self.OPV[hc], self.vPB, o)
            if u == 0:
                for hc in range(8): pk(hc)
            else:
                pk(0); pk(1)
                for hc in range(6):
                    mf(hc); pk(hc+2)
                mf(6); A("s_nop 0"); mf(7)
            if not pf and h == 1:
                A(f"s_cmp_lg_u32 s{self.sW}, {self.dw}")
                A("s_cbranch_scc1 L_w3done")
                A("s_waitcnt vmcnt(0) lgkmcnt(0)")
                self.pw_valid(254)
                A("s_cbranch_scc0 L_nodep")
                self.C("pair word valid: every granule must carry the same stamp, else it was read too early")
                for k in range(6):
                    A(f"v_cmp_ne_u32 vcc, v254, v{self.G[k]+3}")
                    A(f"s_or_b64 s[{self.sE}:{self.sE+1}], vcc, " + ("vcc" if k == 0 else f"s[{self.sE}:{self.sE+1}]"))
                A("s_cbranch_scc1 L_nodep")
                A(f"v_mov_b32 v{self.vTK}, 1")
                for k in range(6):
                    A(f"ds_write_b128 v{self.vLT}, v[{self.G[k]}:{self.G[k]+3}] offset:{self.SP+k*1024}")
                A(f"ds_write_b32 v{self.vZ}, v{self.vTK} offset:{self.CTL+8}", "partner-ready = 1 (LDS ops of a wave are ordered)")
                self.label("L_nodep")
                ticket()
                self.label("L_w3done")
        if pf:
            while self.pq: self.emit_one()
            self.pq = None

    def pair_consts(self):
        A = self.A
        A(f"s_lshl_b32 s{self.sMS}, s{self.sBH}, 1")
        A(f"s_add_u32 s{self.sMS}, s{self.sMS}, s{self.sHALF}")
        A(f"s_lshl_b32 s{self.sMS}, s{self.sMS}, 13", "my d_ws slot")
        A(f"s_xor_b32 s{self.sPS}, s{self.sMS}, 0x2000", "partner slot")
        A(f"s_lshl_b32 s{self.sPW}, s{self.sBH}, 14")
        A(f"s_add_u32 s{self.sPW}, s{self.sPW}, {self.PWOFF}", "pair word")
        A(f"s_lshl_b32 s{self.sMY}, s{self.sHALF}, 30")
        A(f"s_or_b32 s{self.sMY}, s{self.sMY}, 0x80000000", "tag bits of my pair-word value")
        A(f"s_xor_b32 s{self.sPB}, s{self.sMY}, 0x40000000", "tag bits of the partner's value")

    def lane_consts(self):
        A = self.A; T = self.vT
        A(f"v_mov_b32 v{self.vZ}, 0")
        A(f"v_and_b32 v{T+1}, 7, v{self.vLANE}")
        A(f"v_lshlrev_b32 v{self.vQ8}, 3, v{T+1}", "q*8")
        A(f"v_add_u32 v{self.vGS}, 4096, v{self.vLT}", "lane*16 + 4096")

    def endgame_setup(self):
        A = self.A; T = self.vT
        self.C("merge-phase addresses (the stream address registers are dead from here on)")
        self.srd(self.sWS, 22, 256*8192, "d_ws")
        self.srd(self.sOUT, 18, 8*32*4*128*2, "d_out")
        self.pair_consts()
        A(f"s_lshl_b32 s{self.sOB}, s{self.sBH}, 11", "output block")
        self.lane_consts()
        A(f"v_lshrrev_b32 v{T+2}, 4, v{self.vLANE}")
        A(f"v_bfe_u32 v{T+3}, v{self.vLANE}, 3, 1")
        A(f"v_lshlrev_b32 v{self.vOUT}, 8, v{T+1}")
        A(f"v_lshl_add_u32 v{self.vOUT}, v{T+2}, 5, v{self.vOUT}")
        A(f"v_lshl_add_u32 v{self.vOUT}, v{T+3}, 7, v{self.vOUT}", "q*256 + h*128 + g*32")

    def pw_valid(self, v):
        A = self.A; E = self.sE; N = self.sNOW
        A(f"v_readfirstlane_b32 s{E}, v{v}")
        A(f"v_readfirstlane_b32 s{E+1}, v{v+1}")
        A(f"s_xor_b32 s{E+1}, s{E+1}, s{self.sPB}")
        A(f"s_sub_u32 s{E}, s{N}, s{E}")
        A(f"s_subb_u32 s{E+1}, s{N+1}, s{E+1}")
        A(f"s_add_u32 s{E}, s{E}, 0x1000000")
        A(f"s_addc_u32 s{E+1}, s{E+1}, 0")
        A(f"s_lshr_b32 s{E}, s{E}, 27")
        A(f"s_or_b32 s{E}, s{E}, s{E+1}")
        A(f"s_cmp_eq_u32 s{E}, 0")

    def pw_clear(self):
        A = self.A; T = self.vT
        A(f"v_mov_b32 v{T}, 0"); A(f"v_mov_b32 v{T+1}, 0")
        A("s_mov_b64 exec, 1")
        A(f"buffer_store_dwordx2 v[{T}:{T+1}], v{self.vZ}, s[{self.sWS}:{self.sWS+3}], s{self.sPW} offen sc0 sc1", "hand-off consumed: clear the pair word")
        A("s_mov_b64 exec, -1")

    def tags_differ(self, vtag, G):
        for k in range(6):
            self.A(f"v_cmp_ne_u32 vcc, v{vtag}, v{G[k]+3}")
            self.A(f"s_or_b64 s[{self.sE}:{self.sE+1}], vcc, " + ("vcc" if k == 0 else f"s[{self.sE}:{self.sE+1}]"))

    def gl_partial(self, op, slot, G=None):
        G = G or self.G
        for k in range(6):
            o = f"offset:{k*1024}" if k < 4 else f"offset:{(k-4)*1024}"
            va = self.vLT if k < 4 else self.vGS
            self.A(f"buffer_{op}_dwordx4 v[{G[k]}:{G[k]+3}], v{va}, s[{self.sWS}:{self.sWS+3}], s{slot} offen {o} sc0 sc1")

    def factors(self, ms, fs, M):
        A = self.A
        A(f"v_max_f32 v{M}, v{ms[0]}, v{ms[1]}")
        for m in ms[2:]: A(f"v_max_f32 v{M}, v{M}, v{m}")
        for m, f in zip(ms, fs): A(f"v_sub_f32 v{f}, v{m}, v{M}")
        for f in fs: A(f"v_mul_f32 v{f}, s{self.sC}, v{f}")
        for f in fs: A(f"v_exp_f32 v{f}, v{f}")
        A("s_nop 0")

    def store_out(self, X):
        A = self.A; W = self.vQB + 8
        for r in range(4):
            for cp in range(2):
                A(f"v_cvt_pk_bf16_f32 v{W+r*2+cp}, v{X+(2*cp)*4+r}, v{X+(2*cp+1)*4+r}")
        for k in range(2):
            A(f"buffer_store_dwordx4 v[{W+k*4}:{W+k*4+3}], v{self.vOUT}, s[{self.sOUT}:{self.sOUT+3}], s{self.sOB} offen offset:{k*16} {self.ofl}".rstrip())

    def merge(self, partner):
        A = self.A; T = self.vT
        O, CR, vA, ST = self.vO, self.vCR, self.vA, self.vST
        F = self.vS; NC = self.vVF
        M, Lr = (T+4, T+5) if partner else (self.pl(16), self.pl(17))
        ms = [self.vM] + [ST+2*w for w in range(3)] + ([self.pl(16)] if partner else [])
        ls = [self.vLs] + [ST+2*w+1 for w in range(3)] + ([self.pl(17)] if partner else [])
        n = len(ms)
        self.factors(ms, [F+k for k in range(n)], M)
        A(f"v_mul_f32 v{Lr}, v{F}, v{ls[0]}")
        for k in range(1, n): A(f"v_fmac_f32 v{Lr}, v{F+k}, v{ls[k]}")
        if partner:
            A(f"v_rcp_f32 v{T+6}, v{Lr}")
            A("s_nop 0")
            for k in range(n): A(f"v_mul_f32 v{F+k}, v{F+k}, v{T+6}")
        for r in range(4): A(f"v_mul_f32 v{NC+r}, v{F}, v{CR+r}")
        for i in range(16): A(f"v_fma_f32 v{O+i}, v{F}, v{O+i}, -v{NC+(i&3)}")
        for w in range(2):
            for i in range(16): A(f"v_fmac_f32 v{O+i}, v{F+1+w}, v{vA+w*16+i}")
        if partner:
            for i in range(16): A(f"v_fmac_f32 v{O+i}, v{F+3}, v{vA+32+i}")
            for i in range(16): A(f"v_fmac_f32 v{O+i}, v{F+4}, v{self.pl(i)}")
        else:
            for i in range(16): A(f"v_fma_f32 v{self.pl(i)}, v{F+3}, v{vA+32+i}, v{O+i}")

    def endgame(self):
        A = self.A; T = self.vT
        O, CR, vA, ST = self.vO, self.vCR, self.vA, self.vST
        F = self.vS; M, Lr = T+4, T+5
        sTK, sDN, sRDY, sOK = self.sX, self.sY, self.sZ, self.sE
        A("s_waitcnt lgkmcnt(0)")
        A(f"v_readfirstlane_b32 s{sTK}, v{self.vTK}")
        A("s_nop 7", "MFMA results -> VALU")
        self.C("spread the partial over all lanes: lane (q+8h, g) keeps the 16 values of d-half h")
        for i in range(16): self.dpp_hi(O+i, O+16+i)
        self.st(4)
        A(f"s_cmp_eq_u32 s{sTK}, 3")
        A("s_cbranch_scc1 L_last")
        self.C("early arriver: deposit O-corr, m, l in LDS slot [ticket]")
        for i in range(16): A(f"v_sub_f32 v{O+i}, v{O+i}, v{CR+(i&3)}")
        A(f"s_lshl_b32 s{sDN}, s{sTK}, 12")
        A(f"v_add_u32 v{T}, s{sDN}, v{self.vLT}")
        A(f"s_lshl_b32 s{sDN}, s{sTK}, 6")
        A(f"v_add_u32 v{T+1}, s{sDN}, v{self.vQ8}")
        A(f"v_mov_b32 v{T+2}, 1")
        for j in range(4):
            A(f"ds_write_b128 v{T}, v[{O+4*j}:{O+4*j+3}] offset:{self.SL+j*1024}")
        A(f"ds_write_b64 v{T+1}, v[{self.vM}:{self.vLs}] offset:{self.SS}")
        A("s_waitcnt lgkmcnt(0)")
        A("s_mov_b64 exec, 1")
        A(f"ds_add_u32 v{self.vZ}, v{T+2} offset:{self.CTL+4}", "done++")
        A("s_branch L_exit")
        self.label("L_respin")
        self.rd_slots()
        A("s_waitcnt lgkmcnt(0)")
        self.label("L_last")
        A(f"v_readfirstlane_b32 s{sDN}, v{ST+9}")
        A(f"v_readfirstlane_b32 s{sRDY}, v{ST+10}")
        A(f"s_cmp_eq_u32 s{sDN}, 3", "the other three waves took their tickets earlier and are depositing")
        A("s_cbranch_scc0 L_respin")
        A(f"s_cmp_eq_u32 s{sRDY}, 0")
        A("s_cbranch_scc1 L_slow")
        self.mark(1)
        self.C("fast path: own + 3 waves + partner workgroup, normalise, store")
        self.pw_clear()
        self.merge(True)
        self.store_out(O)
        A("s_branch L_fin")
        self.label("L_slow")
        self.mark(2)
        G2 = self.G2
        A(f"s_memrealtime s[{self.sNOW}:{self.sNOW+1}]")
        self.merge(False)
        A("s_waitcnt lgkmcnt(0)")
        for k in range(6): A(f"v_mov_b32 v{self.G[k]+3}, s{self.sNOW}")
        A(f"s_or_b32 s{self.sE}, s{self.sNOW+1}, s{self.sMY}")
        A(f"v_mov_b32 v{T}, s{self.sNOW}")
        A(f"v_mov_b32 v{T+1}, s{self.sE}")
        self.C("publish the tagged partial, swap my stamp into the pair word, and read the partner's slot, all at once;")
        self.C("whoever finds the other's stamp merges; the tags tell whether the partner's stores had landed")
        self.gl_partial("store", self.sMS)
        A("s_mov_b64 exec, 1")
        A(f"buffer_atomic_swap_x2 v[{T}:{T+1}], v{self.vZ}, s[{self.sWS}:{self.sWS+3}], s{self.sPW} offen sc0 sc1")
        A("s_mov_b64 exec, -1")
        self.gl_partial("load", self.sPS, G2)
        A("s_waitcnt vmcnt(6)")
        A(f"v_readfirstlane_b32 s{self.sX}, v{T}")
        self.pw_valid(T)
        A("s_cbranch_scc0 L_exit")
        A(f"v_mov_b32 v{T+2}, s{self.sX}")
        self.pw_clear()
        A("s_waitcnt vmcnt(1)")
        self.label("L_retag")
        self.tags_differ(T+2, G2)
        A("s_cbranch_scc0 L_merge")
        self.mark(3)
        self.gl_partial("load", self.sPS, G2)
        A("s_waitcnt vmcnt(0)")
        A("s_branch L_retag")
        self.label("L_merge")
        M, Lr = self.pl(16), self.pl(17)
        self.factors([M, self.pl(16, G2)], [F, F+1], F+2)
        A(f"v_mul_f32 v{Lr}, v{F}, v{Lr}")
        A(f"v_fmac_f32 v{Lr}, v{F+1}, v{self.pl(17, G2)}")
        A(f"v_rcp_f32 v{Lr}, v{Lr}")
        A("s_nop 0")
        for k in range(2): A(f"v_mul_f32 v{F+k}, v{F+k}, v{Lr}")
        for i in range(16): A(f"v_mul_f32 v{O+i}, v{F}, v{self.pl(i)}")
        for i in range(16): A(f"v_fmac_f32 v{O+i}, v{F+1}, v{self.pl(i, G2)}")
        self.store_out(O)
        self.label("L_fin")

    def build(self):
        A = self.A; T = self.vT
        P = self.L.append
        P(HEADER.rstrip("\n"))
        P(f"; @launch grid=(256,1,1) block=(256,1,1) lds={max(self.LDS, self.ldsmin)}")
        P('.amdgcn_target "amdgcn-amd-amdhsa--gfx950"')
        P(".text"); P(f".globl {KNAME}"); P(".p2align 8"); P(f".type {KNAME},@function"); P(f"{KNAME}:")
        A("s_cmp_ge_u32 s2, 256", "extra workgroups exit")
        A("s_cbranch_scc1 L_end")
        A("s_load_dwordx16 s[4:19], s[0:1], 0", "q qk qv ks kz vs vz out")
        A("s_load_dwordx4 s[20:23], s[0:1], 64", "debug ws")
        self.st(0)
        if self.stamp:
            for k in range(1,7): A(f"s_mov_b32 s{80+2*k}, 0")
        A(f"v_lshrrev_b32 v{T}, 6, v0")
        A(f"v_and_b32 v{self.vLANE}, 63, v0")
        if self.far:
            A(f"s_and_b32 s{self.sBH}, s2, 127"); A(f"s_lshr_b32 s{self.sHALF}, s2, 7")
        else:
            A(f"s_lshr_b32 s{self.sBH}, s2, 1", "(b,hkv)")
            A(f"s_and_b32 s{self.sHALF}, s2, 1")
        A(f"v_readfirstlane_b32 s{self.sW}, v{T}", "wave id")
        if self.cpf:
            self.C("pull this kernel's own code into L2 early (one dword per 128-B line), so that first-pass instruction misses are short")
            A("s_getpc_b64 s[64:65]")
            self.label("L_pc")
            A("s_and_b32 s65, s65, 0xffff")
            A("s_mov_b32 s66, L_code_end-L_pc")
            A("s_mov_b32 s67, 0x20000")
            A(f"v_lshlrev_b32 v{T+7}, 7, v0", "thread*128: 256 threads cover 32 KiB (range-checked)")
            A(f"buffer_load_dword v254, v{T+7}, s[64:67], 0 offen")
        n_, g_ = T+1, T+2
        A(f"v_and_b32 v{n_}, 15, v{self.vLANE}")
        A(f"v_lshrrev_b32 v{g_}, 4, v{self.vLANE}")
        self.C("K lane offset: row (8*(m>>2) + ((m>>1)&1)), byte (m&1)*64 + g*16")
        A(f"v_lshrrev_b32 v{T+3}, 2, v{n_}")
        A(f"v_lshlrev_b32 v{self.vOK}, 12, v{T+3}")
        A(f"v_bfe_u32 v{T+3}, v{n_}, 1, 1")
        A(f"v_lshl_add_u32 v{self.vOK}, v{T+3}, 9, v{self.vOK}")
        A(f"v_and_b32 v{T+3}, 1, v{n_}")
        A(f"v_lshl_add_u32 v{self.vOK}, v{T+3}, 6, v{self.vOK}")
        A(f"v_lshl_add_u32 v{self.vOK}, v{g_}, 4, v{self.vOK}")
        A(f"v_lshlrev_b32 v{T+4}, 5, v{T+3}")
        A(f"v_lshl_add_u32 v{T+4}, v{g_}, 3, v{T+4}", "kz (A layout): (n&1)*32 + g*8")
        A(f"v_lshrrev_b32 v{T+3}, 3, v{n_}")
        A(f"v_lshlrev_b32 v{T+5}, 5, v{T+3}")
        A(f"v_lshl_add_u32 v{T+5}, v{g_}, 3, v{T+5}", "ks (B layout): (n>>3)*32 + g*8")
        A(f"v_and_b32 v{T+3}, 7, v{n_}")
        A(f"v_lshl_add_u32 v{T+6}, v{T+3}, 8, v{T+5}", "q (B layout): + (n&7)*256")
        A(f"v_lshlrev_b32 v{self.vOV}, 12, v{g_}")
        A(f"v_lshl_add_u32 v{self.vOV}, v{n_}, 4, v{self.vOV}", "V lane offset: row 8g, byte n*16")
        A(f"v_lshl_add_u32 v{self.vOS}, v{g_}, 2, v{T}")
        A(f"v_lshlrev_b32 v{self.vOS}, 2, v{self.vOS}")
        A(f"v_add_u32 v{self.vOS}, 5120, v{self.vOS}", "5120 + (4g+wave)*4: scale dwords inside a table entry")
        A(f"v_lshlrev_b32 v{self.vLT}, 4, v{self.vLANE}")
        A(f"s_mov_b32 s{self.sMASK}, 0x00ff00ff", "lanes that carry a query row")
        A(f"s_mov_b32 s{self.sMASK+1}, 0x00ff00ff")
        A(f"s_mov_b32 s{self.sC}, {f32hex(C_SCALE)}")
        A(f"s_mov_b32 s{self.sNC}, {f32hex(-C_SCALE)}")
        A(f"s_lshl_b32 s{self.sOFF}, s{self.sBH}, 20")
        A(f"s_lshl_b32 s{self.sX}, s{self.sHALF}, 16")
        A(f"s_add_u32 s{self.sOFF}, s{self.sOFF}, s{self.sX}")
        A(f"s_lshl_b32 s{self.sX}, s{self.sW}, 10")
        A(f"s_add_u32 s{self.sOFF}, s{self.sOFF}, s{self.sX}", "(b,hkv) base + half*64K + wave*1K")
        if self.rot: A(f"s_bfe_u32 s{self.sSTEP}, s2, 0x30003", "start round (wg>>3)&7")
        else: A(f"s_mov_b32 s{self.sSTEP}, 0")
        A("s_waitcnt lgkmcnt(0)")
        if self.stamp == 1: self.st(1)
        if self.touch:
            self.C("touch every input once through the scalar path: starts all address translations in parallel")
            A(f"s_lshl_b32 s{self.sX}, s{self.sBH}, 12")
            A(f"s_lshl_b32 s{self.sY}, s{self.sBH}, 11")
            A(f"s_load_dword s94, s[6:7], s{self.sOFF}")
            A(f"s_load_dword s95, s[8:9], s{self.sOFF}")
            A(f"s_load_dword s96, s[4:5], s{self.sY}")
            for k, p in enumerate((10, 12, 14, 16)):
                A(f"s_load_dword s{97+k}, s[{p}:{p+1}], s{self.sX}")
        NB = self.nb
        GPW = 8 // NB
        self.srd(self.sK, 6, 0x8000000, "qk")
        self.set_step_offsets()
        if NB < 4:
            A(f"s_cmp_lt_u32 s{self.sW}, {NB}")
            A("s_cbranch_scc1 L_builder")
            self.C("streaming-only waves: request the whole first step at once")
            for a in range(4): self.ld_k(a)
            self.srd(self.sV, 8, 0x8000000, "qv")
            self.srd(self.sVS, 14, 8*16*2048*2, "v_scales")
            self.srd(self.sVZ, 16, 8*16*2048*2, "v_zeros")
            self.ld_v(0); self.ld_v(1)
            A("s_branch L_built")
            self.label("L_builder")
        save = self.L; self.L = []
        for a in range(4): self.ld_k(a)
        self.ld_v(0); self.ld_v(1)
        defer = self.L; self.L = save
        RAW = self.SL
        self.C("small inputs, 2 wide loads per array: wave 0 q + v_zeros, wave 1 k_scales, wave 2 k_zeros, wave 3 v_scales")
        self.C("per-round arrays: lane L reads 16 B at round (L>>4)(+4), i.e. group 2*round+half, byte (L&15)*16")
        X, Y, Z = self.sX, self.sY, self.sZ
        A(f"s_cmp_eq_u32 s{self.sW}, 1"); A(f"s_cselect_b32 s{self.sWS}, s10, s16"); A(f"s_cselect_b32 s{self.sWS+1}, s11, s17")
        A(f"s_cmp_eq_u32 s{self.sW}, 2"); A(f"s_cselect_b32 s{self.sWS}, s12, s{self.sWS}"); A(f"s_cselect_b32 s{self.sWS+1}, s13, s{self.sWS+1}")
        A(f"s_cmp_eq_u32 s{self.sW}, 3"); A(f"s_cselect_b32 s{self.sWS}, s14, s{self.sWS}"); A(f"s_cselect_b32 s{self.sWS+1}, s15, s{self.sWS+1}")
        A(f"s_and_b32 s{self.sWS+1}, s{self.sWS+1}, 0xffff")
        A(f"s_mov_b32 s{self.sWS+2}, {8*16*2048*2}", "all four arrays have 524288 bytes")
        A(f"s_mov_b32 s{self.sWS+3}, 0x20000")
        A(f"s_lshl_b32 s{X}, s{self.sBH}, 12"); A(f"s_lshl_b32 s{Y}, s{self.sHALF}, 8"); A(f"s_add_u32 s{X}, s{X}, s{Y}")
        A(f"v_lshlrev_b32 v{T+3}, 9, v{g_}")
        A(f"v_lshl_add_u32 v{T+3}, v{n_}, 4, v{T+3}", "(L>>4)*512 + (L&15)*16")
        A(f"buffer_load_dwordx4 v[36:39], v{T+3}, s[{self.sWS}:{self.sWS+3}], s{X} offen")
        A(f"buffer_load_dwordx4 v[40:43], v{T+3}, s[{self.sWS}:{self.sWS+3}], s{X} offen offset:2048")
        self.srd(self.sDBG, 4, 8*32*4*128*2, "q")
        A(f"s_lshl_b32 s{Y}, s{self.sBH}, 11")
        A(f"s_cmp_lg_u32 s{self.sW}, 0"); A(f"s_cselect_b32 s{Y}, 0x40000, s{Y}", "only wave 0 reads q (others are out of range: no access)")
        A(f"buffer_load_dwordx4 v[44:47], v{self.vLT}, s[{self.sDBG}:{self.sDBG+3}], s{Y} offen")
        A(f"buffer_load_dwordx4 v[48:51], v{self.vLT}, s[{self.sDBG}:{self.sDBG+3}], s{Y} offen offset:1024")
        for _ in range(self.n0): self.L.append(defer.pop(0))
        self.srd(self.sV, 8, 0x8000000, "qv")
        cnt = [0]
        def B(x):
            self.A(x); cnt[0] += 1
            if len(defer) > self.keep and cnt[0] % self.gap == 0:
                if self.pthr: self.L.append(f"  s_waitcnt vmcnt({self.pthr-1})")
                self.L.append(defer.pop(0))
        for k in range(32): A(f"v_mov_b32 v{self.vO+k}, 0")
        for k in range(4): A(f"v_mov_b32 v{self.vCR+k}, 0")
        A(f"v_mov_b32 v{self.vM}, 0xff800000")
        A(f"v_mov_b32 v{self.vLs}, 0")
        self.C("LDS destination: ks/kz -> raw staging [round][256 B]; vs/vz -> table entry [round] + 5120 / 5376")
        A(f"s_add_u32 s{Z}, s{self.sW}, 1"); A(f"s_and_b32 s{Z}, s{Z}, 2", "2 for waves 1,2 (raw), 0 for waves 3,0 (table)")
        A(f"s_mov_b32 s{X}, {self.ENT}")
        A(f"s_cmp_lg_u32 s{Z}, 0")
        A(f"s_cselect_b32 s{X}, 256, s{X}", "round stride")
        A(f"s_lshl_b32 s{Y}, s{self.sW}, 11"); A(f"s_add_u32 s{Y}, s{Y}, {RAW}", "raw base of waves 1,2")
        A(f"s_cmp_eq_u32 s{self.sW}, 3"); A(f"s_cselect_b32 s{Y}, 5120, s{Y}")
        A(f"s_cmp_eq_u32 s{self.sW}, 0"); A(f"s_cselect_b32 s{Y}, 5376, s{Y}")
        A(f"v_mul_lo_u32 v{T+3}, v{g_}, s{X}")
        A(f"v_lshl_add_u32 v{T+3}, v{n_}, 4, v{T+3}")
        A(f"v_add_u32 v{T+3}, s{Y}, v{T+3}")
        A(f"s_lshl_b32 s{X}, s{X}, 2")
        A(f"v_add_u32 v{T+7}, s{X}, v{T+3}")
        for k in range(4): A(f"v_mov_b32 v{52+k}, 0")
        A(f"ds_write_b128 v52, v[52:55] offset:{self.CTL}", "ticket, done, partner-ready = 0")
        A(f"s_waitcnt vmcnt({self.n0 + 2})")
        A(f"ds_write_b128 v{T+3}, v[36:39]")
        A(f"ds_write_b128 v{T+7}, v[40:43]")
        A(f"s_waitcnt vmcnt({self.n0})")
        A(f"s_cmp_lg_u32 s{self.sW}, 0")
        A("s_cbranch_scc1 L_noq")
        A(f"ds_write_b128 v{self.vLT}, v[44:47] offset:{RAW}")
        A(f"ds_write_b128 v{self.vLT}, v[48:51] offset:{RAW+1024}")
        self.label("L_noq")
        A("s_waitcnt lgkmcnt(0)")
        if self.stamp == 6: self.st(1)
        A("s_barrier")
        if self.stamp == 6: self.st(6)
        self.C("table build: B operands bf16(q*ks) hi/lo and C0 = -(q*ks).kz for rounds 2w, 2w+1")
        KSZ = 52 - 4
        for i in range(4): A(f"ds_read_b64 v[{16+2*i}:{17+2*i}], v{T+6} offset:{RAW+64*i}")
        A(f"s_lshl_b32 s{X}, s{self.sW}, 9")
        A(f"v_add_u32 v{T+5}, s{X}, v{T+5}")
        A(f"v_add_u32 v{T+4}, s{X}, v{T+4}")
        for gi in range(GPW):
            for i in range(4):
                r = KSZ + gi*16 + 2*i
                A(f"ds_read_b64 v[{r}:{r+1}], v{T+5} offset:{RAW+2048+gi*256+64*i}")
            for i in range(4):
                r = KSZ + gi*16 + 8 + 2*i
                A(f"ds_read_b64 v[{r}:{r+1}], v{T+4} offset:{RAW+4096+gi*256+64*i}")
        self.A(f"s_mul_i32 s{self.sZ}, s{self.sW}, {GPW*self.ENT}")
        self.A(f"v_add_u32 v{T+7}, s{self.sZ}, v{self.vLT}")
        self.A("s_waitcnt lgkmcnt(15)")
        self.A("s_waitcnt lgkmcnt(0)")
        QF = 116
        QFR = list(range(116, 124)) + list(range(252, 256)) + list(range(44, 48))
        for k in range(8):
            B(f"v_lshlrev_b32 v{QFR[2*k]}, 16, v{16+k}")
            B(f"v_and_b32 v{QFR[2*k+1]}, 0xffff0000, v{16+k}")
        QB = self.vQB
        for gi in range(GPW):
            KS = KSZ + gi*16; KZ = KS + 8
            for k in range(8):
                t0, t1, t2, t3 = T, T+1, T+2, T+3
                B(f"v_lshlrev_b32 v{t0}, 16, v{KS+k}")
                B(f"v_and_b32 v{t1}, 0xffff0000, v{KS+k}")
                B(f"v_mul_f32 v{t0}, v{t0}, v{QFR[2*k]}")
                B(f"v_mul_f32 v{t1}, v{t1}, v{QFR[2*k+1]}")
                B(f"v_cvt_pk_bf16_f32 v{QB+k}, v{t0}, v{t1}")
                B(f"v_lshlrev_b32 v{t2}, 16, v{QB+k}")
                B(f"v_and_b32 v{t3}, 0xffff0000, v{QB+k}")
                B(f"v_sub_f32 v{t0}, v{t0}, v{t2}")
                B(f"v_sub_f32 v{t1}, v{t1}, v{t3}")
                B(f"v_cvt_pk_bf16_f32 v{QB+8+k}, v{t0}, v{t1}")
            for k in range(8):
                B(f"v_xor_b32 v{KZ+k}, 0x80008000, v{KZ+k}")
            self.A("s_nop 1")
            C0 = QB+16
            self.mfma(C0, KZ, QB, None)
            self.mfma(C0, KZ+4, QB+4, C0)
            self.mfma(C0, KZ, QB+8, C0)
            self.mfma(C0, KZ+4, QB+12, C0)
            for it in range(4):
                self.A(f"ds_write_b128 v{T+7}, v[{QB+it*4}:{QB+it*4+3}] offset:{gi*self.ENT+it*1024}")
            self.A("s_nop 7")
            self.A(f"ds_write_b128 v{T+7}, v[{C0}:{C0+3}] offset:{gi*self.ENT+4096}")
            if gi + 1 < GPW: self.A("s_waitcnt lgkmcnt(0)")
        while len(defer) > 16:
            if self.pthr: self.L.append(f"  s_waitcnt vmcnt({self.pthr-1})")
            self.L.append(defer.pop(0))
        if NB < 4: self.label("L_built")
        A = self.A
        A("s_waitcnt lgkmcnt(0)")
        A("s_barrier")
        self.st(2)
        self.ld_qb()
        self.rest = defer
        A(f"s_mov_b32 s{self.sCNT}, 7")
        self.kphase(True)
        if self.stamp == 6: self.st(3)
        self.label("L_loop")
        A(f"s_add_u32 s{self.sSTEP}, s{self.sSTEP}, 1")
        A(f"s_and_b32 s{self.sSTEP}, s{self.sSTEP}, 7")
        self.set_step_offsets()
        self.svphase(True)
        if self.stamp == 6:
            A(f"s_cmp_lg_u32 s{self.sCNT}, 7"); A("s_cbranch_scc1 L_s6a"); self.st(4); self.label("L_s6a")
        self.kphase(False)
        if self.stamp == 6:
            A(f"s_cmp_lg_u32 s{self.sCNT}, 7"); A("s_cbranch_scc1 L_s6b"); self.st(5); A("s_waitcnt lgkmcnt(0)"); self.label("L_s6b")
        if self.stamp == 7:
            A("s_memrealtime s[94:95]")
            A(f"s_sub_u32 m0, 7, s{self.sCNT}")
            A("s_waitcnt lgkmcnt(0)")
            A("s_nop 3")
            A("v_writelane_b32 v255, s94, m0")
        A(f"s_sub_u32 s{self.sCNT}, s{self.sCNT}, 1")
        A(f"s_cmp_lg_u32 s{self.sCNT}, 0")
        A("s_cbranch_scc1 L_loop")
        if self.stamp == 7:
            self.srd(32, 22, 0x1000000)
            A("s_lshl_b32 s97, s2, 2"); A(f"s_add_u32 s97, s97, s{self.sW}")
            A("s_lshl_b32 s97, s97, 6"); A("s_add_u32 s97, s97, 0x500000")
            A(f"v_lshlrev_b32 v254, 2, v{self.vLANE}")
            A("s_mov_b64 exec, 0xff")
            A("buffer_store_dword v255, v254, s[32:35], s97 offen")
            A("s_mov_b64 exec, -1")
            A("s_waitcnt vmcnt(0)")
        self.done6 = True
        self.endgame_setup()
        self.svphase(False)
        self.st(3)
        self.endgame()
        if self.stamp:
            A("s_waitcnt vmcnt(0)")
            self.st(6)
            self.label("L_exit")
            self.st_dump()
        else:
            self.label("L_exit")
        self.label("L_end")
        A("s_endpgm")
        self.label("L_code_end")
        P = self.L.append
        P('.section .rodata,"a"'); P(".p2align 6"); P(f".amdhsa_kernel {KNAME}")
        P(f"  .amdhsa_next_free_vgpr {self.NV}")
        P(f"  .amdhsa_next_free_sgpr {102 if (self.stamp or self.touch) else 80}")
        P(f"  .amdhsa_accum_offset {self.NV}")
        P("  .amdhsa_group_segment_fixed_size 0")
        P("  .amdhsa_kernarg_size 80")
        P("  .amdhsa_user_sgpr_count 2")
        P("  .amdhsa_user_sgpr_kernarg_segment_ptr 1")
        P("  .amdhsa_system_sgpr_workgroup_id_x 1")
        P("  .amdhsa_float_denorm_mode_32 3")
        P(".end_amdhsa_kernel")
        return "\n".join(self.L) + "\n"

if __name__ == "__main__":
    out = sys.argv[1]
    kw = {}
    for a in sys.argv[2:]:
        k, v = a.split("=")
        kw[k] = int(v) if v.lstrip("-").isdigit() else v
    open(out, "w").write(Gen(**kw).build())
```

```python
import struct, sys

KNAME = "standalone__kv_cache_quant_int4_int2_kv_with_per_channel_or_per_token_scales__sampling_kernel"
HEADER = open("standalone__kv_cache_quant_int4_int2_kv_with_per_channel_or_per_token_scales__sampling.s.ref").read().split("; Override launch")[0]

DOC = """;
;
;
;"""

def f32hex(x):
    return "0x%08x" % struct.unpack("<I", struct.pack("<f", x))[0]

C_SCALE = (128.0 ** -0.5) * 1.4426950408889634

class Gen:
    def __init__(self, stamp=0, rot=1, thr=5556, gk=7, gv=10, n0=16, gap=24, keep=8, far=0, ldsmin=0):
        self.stamp = stamp; self.rot = rot; self.thr = thr; self.gk = gk; self.gv = gv
        self.n0 = n0; self.gap = gap; self.keep = keep; self.far = far; self.ldsmin = ldsmin
        self.L = []; self.lbl = 0
        self.pq = None; self.hold = False; self.since = 0; self.nseq = 0; self.nload = 0; self.gi = gk

    def A(self, s, c=None):
        self.L.append("  " + s + (f"    ; {c}" if c else ""))
        if self.pq is not None and not self.hold:
            self.since += 1
            if self.pq and self.since >= self.gi: self.emit_one()
    def emit_one(self):
        line = self.pq.pop(0)
        if self.thr:
            pat = str(self.thr); t = int(pat[self.nload % len(pat)]); self.nload += 1
            self.L.append(f"  s_waitcnt vmcnt({t-1})")
        self.L.append(line); self.nseq += 1; self.since = 0
    def capture(self, fn):
        save, pq = self.L, self.pq
        self.L, self.pq = [], None
        fn()
        lines, self.L, self.pq = self.L, save, pq
        return lines
    def C(self, c): self.L.append(f"  ; {c}")
    def label(self, s): self.L.append(s + ":")
    def newlabel(self, p):
        self.lbl += 1
        return f"{p}_{self.lbl}"

    vLANE = 1; vOK = 2; vOV = 3; vOS = 4; vLT = 5
    vT = 6
    vM = 14; vLs = 15
    vQB = 16
    vD = 36
    vS = 52
    vVF = 60
    vPB = 68
    OPV = [36, 40, 44, 48, 60, 64, 72, 76]
    vO = 80
    vCR = 112
    vVS = 116; vVZ = 120
    vRK = 124
    vRV = 188
    vQ8 = 2; vZ = 3; vGS = 4; vOUT = 252; vTK = 253
    vA = 124
    vST = 24
    G = [172, 176, 180, 184, 16, 20]
    G2 = [188, 192, 196, 200, 204, 208]
    def pl(self, p, G=None): return (G or self.G)[p//3] + p % 3
    NV = 256
    sK = 24; sV = 28; sWS = 40; sQ = 64; sOUT = 68
    sMASK = 44; sC = 46; sNC = 47
    sW = 48; sBH = 49; sHALF = 50; sOFF = 51; sCNT = 53; sSTEP = 54
    sX = 55; sY = 56; sZ = 57; sE = 58; sLQ = 60
    sPW = 61; sMY = 62; sPB = 63; sNOW = 64; sMS = 72; sPS = 73; sOB = 74
    sTA = 76
    ENT = 5632
    SL = 8*ENT; SS = SL + 3*4096; CTL = SS + 3*64; LDS = CTL + 16
    PWOFF = 7168

    def st(self, k):
        if self.stamp: self.A(f"s_memrealtime s[{80+2*k}:{81+2*k}]")
    def mark(self, x):
        if self.stamp == 8: self.A(f"s_mov_b32 s82, {x}")
    def st_dump(self):
        A = self.A
        A("s_mov_b64 exec, -1"); A("s_getreg_b32 s96, hwreg(HW_REG_XCC_ID)"); A("s_waitcnt lgkmcnt(0)")
        self.srd(24, 22, 0x1000000)
        A("s_lshl_b32 s97, s2, 2"); A(f"s_add_u32 s97, s97, s{self.sW}")
        A("s_lshl_b32 s97, s97, 6"); A("s_add_u32 s97, s97, 0x400000")
        for k in range(8):
            A(f"v_mov_b32 v{248+(k&3)}, s{80+2*k}" if k < 7 else f"v_mov_b32 v{248+(k&3)}, s96")
            if k & 3 == 3:
                A("v_mov_b32 v247, 0"); A("s_mov_b64 exec, 1")
                A(f"buffer_store_dwordx4 v[248:251], v247, s[24:27], s97 offen offset:{(k>>2)*16}")
                A("s_mov_b64 exec, -1"); A("s_nop 1")

    def srd(self, d, ptr, nbytes, c=None):
        self.A(f"s_mov_b32 s{d}, s{ptr}", c)
        self.A(f"s_and_b32 s{d+1}, s{ptr+1}, 0xffff")
        self.A(f"s_mov_b32 s{d+2}, {nbytes}")
        self.A(f"s_mov_b32 s{d+3}, 0x20000")
    def ld_k(self):
        for a in range(4):
            for i in range(4):
                r = self.vRK + a*16 + i*4
                self.A(f"buffer_load_dwordx4 v[{r}:{r+3}], v{self.vOK}, s[{self.sK}:{self.sK+3}], s{self.sTA+a} offen offset:{i*128} nt")
    def ld_v(self):
        for u in range(2):
            for j in range(8):
                a, b, h = 2*u + (j >> 2), (j >> 1) & 1, j & 1
                r = self.vRV + u*32 + j*4
                self.A(f"buffer_load_dwordx4 v[{r}:{r+3}], v{self.vOV}, s[{self.sV}:{self.sV+3}], s{self.sTA+a} offen offset:{b*512+h*256} nt")
    def rd_qb(self):
        self.A(f"v_add_u32 v{self.vT}, s{self.sLQ}, v{self.vLT}")
        for it in range(5):
            r = self.vQB + it*4
            self.A(f"ds_read_b128 v[{r}:{r+3}], v{self.vT} offset:{it*1024}")
    def rd_sz(self):
        self.A(f"v_add_u32 v{self.vT+3}, s{self.sLQ}, v{self.vOS}")
        for base, r in ((0, self.vVS), (64, self.vVZ)):
            self.A(f"ds_read2_b32 v[{r}:{r+1}], v{self.vT+3} offset0:{base} offset1:{base+16}", "v_scales (token pairs of tiles 0,1)" if base == 0 else "v_zeros")
            self.A(f"ds_read2_b32 v[{r+2}:{r+3}], v{self.vT+3} offset0:{base+32} offset1:{base+48}")
    def set_step_offsets(self):
        self.A(f"s_lshl_b32 s{self.sTA}, s{self.sSTEP}, 17")
        self.A(f"s_add_u32 s{self.sTA}, s{self.sTA}, s{self.sOFF}", "K/V byte offset of tile 0 of the round")
        for a in range(1, 4):
            self.A(f"s_add_u32 s{self.sTA+a}, s{self.sTA}, {a*16384}")
        self.A(f"s_mul_i32 s{self.sLQ}, s{self.sSTEP}, {self.ENT}", "LDS table entry of the round")
    def xlane(self, op, x, t):
        self.A(f"v_mov_b32 v{t}, v{x}"); self.A("s_nop 1")
        self.A(f"v_permlane16_swap_b32 v{t}, v{x}")
        self.A(f"{op} v{x}, v{x}, v{t}")
        self.A(f"v_mov_b32 v{t}, v{x}"); self.A("s_nop 1")
        self.A(f"v_permlane32_swap_b32 v{t}, v{x}")
        self.A(f"{op} v{x}, v{x}, v{t}")
    def mfma(self, d, a, b, c):
        cs = "0" if c is None else f"v[{c}:{c+3}]"
        self.A(f"v_mfma_f32_16x16x32_bf16 v[{d}:{d+3}], v[{a}:{a+3}], v[{b}:{b+3}], {cs}")
    def dppadd(self, a):
        d = self.vD + a*4
        for b in range(2):
            self.A(f"v_add_f32_dpp v{self.vS+2*a+b}, v{d+2*b+1}, v{d+2*b} row_ror:8 row_mask:0xf bank_mask:0xf")
    def dpp_hi(self, dst, src):
        self.A(f"v_mov_b32_dpp v{dst}, v{src} row_ror:8 row_mask:0xf bank_mask:0xc")
    def rd_slots(self):
        A = self.A
        A(f"ds_read_b64 v[{self.vST+8}:{self.vST+9}], v{self.vZ} offset:{self.CTL}", "ticket, done (read first: LDS ops of a wave are ordered)")
        for w in range(3):
            A(f"ds_read_b64 v[{self.vST+2*w}:{self.vST+2*w+1}], v{self.vQ8} offset:{self.SS+w*64}")
        for w in range(3):
            for j in range(4):
                r = self.vA + w*16 + j*4
                A(f"ds_read_b128 v[{r}:{r+3}], v{self.vLT} offset:{self.SL+w*4096+j*1024}")

    def kphase(self, rest=None):
        A = self.A
        QB = self.vQB
        Bhi0, Bhi1, Blo0, Blo1, C0 = QB, QB+4, QB+8, QB+12, QB+16
        self.nseq = 0; self.since = 0; self.gi = self.gk
        vl = self.capture(self.ld_v) if rest is None else rest
        pre = 16 - len(vl)
        self.pq = list(vl)
        for a in range(4):
            n = (3 - a)*4 + pre + self.nseq
            self.C(f"K tile {a}: int32 -> bf16, hi + lo MFMAs, accumulator starts at -(q*ks).kz")
            A(f"s_waitcnt vmcnt({n}) lgkmcnt(0)" if a == 0 else f"s_waitcnt vmcnt({n})")
            if a == 0: self.rd_sz()
            R = self.vRK + a*16
            for k in range(16): A(f"v_cvt_f32_i32 v{R+k}, v{R+k}")
            for mm in range(2):
                for k in range(4):
                    A(f"v_cvt_pk_bf16_f32 v{R+mm*8+k}, v{R+mm*8+2*k}, v{R+mm*8+2*k+1}")
            if a > 0: self.dppadd(a-1)
            else: A("s_nop 1")
            D = self.vD + a*4
            self.mfma(D, R, Bhi0, C0)
            self.mfma(D, R+8, Bhi1, D)
            self.mfma(D, R, Blo0, D)
            self.mfma(D, R+8, Blo1, D)
        while self.pq: self.emit_one()
        self.pq = None

    def svphase(self, pf):
        A = self.A
        self.nseq = 0; self.since = 0; self.gi = self.gv
        if pf:
            self.pq = self.capture(self.ld_k)
            self.rd_qb(); A("s_nop 1")
        self.dppadd(3)
        S = self.vS; T = self.vT
        t, u = T+1, T+2
        self.C("online softmax: running (true) row max; rescale only when it grew")
        A(f"v_max3_f32 v{t}, v{S}, v{S+1}, v{S+2}")
        A(f"v_max3_f32 v{t}, v{t}, v{S+3}, v{S+4}")
        A(f"v_max3_f32 v{t}, v{t}, v{S+5}, v{S+6}")
        A(f"v_max_f32 v{t}, v{t}, v{S+7}")
        self.xlane("v_max_f32", t, u)
        skip = self.newlabel("L_norescale")
        A(f"v_cmp_gt_f32 vcc, v{t}, v{self.vM}")
        A(f"s_and_b64 s[{self.sE}:{self.sE+1}], vcc, s[{self.sMASK}:{self.sMASK+1}]")
        self.hold = True
        A(f"s_cbranch_scc0 {skip}")
        A(f"v_max_f32 v{t}, v{t}, v{self.vM}")
        A(f"v_sub_f32 v{u}, v{self.vM}, v{t}")
        A(f"v_mul_f32 v{u}, s{self.sC}, v{u}")
        A(f"v_exp_f32 v{u}, v{u}")
        A(f"v_mov_b32 v{self.vM}, v{t}")
        for k in range(32): A(f"v_mul_f32 v{self.vO+k}, v{u}, v{self.vO+k}")
        for k in range(4): A(f"v_mul_f32 v{self.vCR+k}, v{u}, v{self.vCR+k}")
        A(f"v_mul_f32 v{self.vLs}, v{u}, v{self.vLs}")
        self.label(skip)
        self.hold = False
        A(f"v_mul_f32 v{t}, s{self.sNC}, v{self.vM}")
        for j in range(8): A(f"v_fma_f32 v{S+j}, v{S+j}, s{self.sC}, v{t}")
        for j in range(8): A(f"v_exp_f32 v{S+j}, v{S+j}")
        A("s_waitcnt lgkmcnt(5)" if pf else "s_waitcnt lgkmcnt(0)", "scales have arrived (younger table reads may still fly)")
        VF = self.vVF
        for k in range(4):
            A(f"v_lshlrev_b32 v{VF+2*k}, 16, v{self.vVS+k}")
            A(f"v_and_b32 v{VF+2*k+1}, 0xffff0000, v{self.vVS+k}")
        for j in range(8): A(f"v_add_f32 v{self.vLs}, v{self.vLs}, v{S+j}")
        for j in range(8): A(f"v_mul_f32 v{S+j}, v{S+j}, v{VF+j}")
        for a in range(4): A(f"v_cvt_pk_bf16_f32 v{self.vPB+a}, v{S+2*a}, v{S+2*a+1}")
        A("s_nop 1")
        self.mfma(self.vCR, self.vVZ, self.vPB, self.vCR)
        if not pf:
            self.C("m, l, corr are final: sum l over the lane groups, copy the row stats to lanes q+8")
            self.xlane("v_add_f32", self.vLs, T)
            A("s_nop 1")
            self.dpp_hi(self.vM, self.vM); self.dpp_hi(self.vLs, self.vLs)
            for r in range(4): self.dpp_hi(self.vCR+r, self.vCR+r)
        for un in range(2):
            self.C(f"V tiles {2*un},{2*un+1}: int32 -> bf16" + (", O^T += V^T (p*vs)^T" if un else ""))
            A(f"s_waitcnt vmcnt({(1-un)*8 + self.nseq})")
            if not pf and un == 1:
                self.C("all data of this wave has arrived: take the merge ticket, read the merge state early")
                A(f"v_mov_b32 v{self.vTK}, 1")
                A("s_mov_b64 exec, 1")
                A(f"ds_add_rtn_u32 v{self.vTK}, v{self.vZ}, v{self.vTK} offset:{self.CTL}")
                A("s_mov_b64 exec, -1")
                self.rd_slots()
            R = self.vRV + un*32
            for k in range(32): A(f"v_cvt_f32_i32 v{R+k}, v{R+k}")
            def pk(hc):
                hh, c = hc >> 2, hc & 3
                for a2 in range(2):
                    A(f"v_cvt_pk_bf16_f32 v{self.OPV[hc]+2*un+a2}, v{R+(a2*4+hh)*4+c}, v{R+(a2*4+2+hh)*4+c}")
            def mf(hc):
                o = self.vO + hc*4
                self.mfma(o, self.OPV[hc], self.vPB, o)
            if un == 0:
                for hc in range(8): pk(hc)
            else:
                pk(0); pk(1)
                for hc in range(6):
                    mf(hc); pk(hc+2)
                mf(6); A("s_nop 0"); mf(7)
        if pf:
            while self.pq: self.emit_one()
            self.pq = None

    def endgame_setup(self):
        A = self.A; T = self.vT
        self.C("merge-phase addresses (the stream address registers are dead from here on)")
        self.srd(self.sWS, 22, 256*8192, "d_ws")
        self.srd(self.sOUT, 18, 8*32*4*128*2, "d_out")
        A(f"s_memrealtime s[{self.sNOW}:{self.sNOW+1}]", "launch-unique stamp: tags this launch's hand-off words in d_ws")
        A(f"s_lshl_b32 s{self.sMS}, s{self.sBH}, 1")
        A(f"s_add_u32 s{self.sMS}, s{self.sMS}, s{self.sHALF}")
        A(f"s_lshl_b32 s{self.sMS}, s{self.sMS}, 13", "my d_ws slot")
        A(f"s_xor_b32 s{self.sPS}, s{self.sMS}, 0x2000", "partner slot")
        A(f"s_lshl_b32 s{self.sPW}, s{self.sBH}, 14")
        A(f"s_add_u32 s{self.sPW}, s{self.sPW}, {self.PWOFF}", "pair word")
        A(f"s_lshl_b32 s{self.sMY}, s{self.sHALF}, 30")
        A(f"s_or_b32 s{self.sMY}, s{self.sMY}, 0x80000000", "tag bits of my pair-word value")
        A(f"s_xor_b32 s{self.sPB}, s{self.sMY}, 0x40000000", "tag bits of the partner's value")
        A(f"s_lshl_b32 s{self.sOB}, s{self.sBH}, 11", "output block")
        A(f"v_mov_b32 v{self.vZ}, 0")
        A(f"v_and_b32 v{T+1}, 7, v{self.vLANE}")
        A(f"v_lshlrev_b32 v{self.vQ8}, 3, v{T+1}", "q*8")
        A(f"v_add_u32 v{self.vGS}, 4096, v{self.vLT}", "lane*16 + 4096")
        A(f"v_lshrrev_b32 v{T+2}, 4, v{self.vLANE}")
        A(f"v_bfe_u32 v{T+3}, v{self.vLANE}, 3, 1")
        A(f"v_lshlrev_b32 v{self.vOUT}, 8, v{T+1}")
        A(f"v_lshl_add_u32 v{self.vOUT}, v{T+2}, 5, v{self.vOUT}")
        A(f"v_lshl_add_u32 v{self.vOUT}, v{T+3}, 7, v{self.vOUT}", "q*256 + h*128 + g*32")
    def gl_partial(self, op, slot, G):
        for k in range(6):
            va = self.vLT if k < 4 else self.vGS
            self.A(f"buffer_{op}_dwordx4 v[{G[k]}:{G[k]+3}], v{va}, s[{self.sWS}:{self.sWS+3}], s{slot} offen offset:{(k&3)*1024} sc0 sc1")
    def factors(self, ms, fs, M):
        A = self.A
        A(f"v_max_f32 v{M}, v{ms[0]}, v{ms[1]}")
        for m in ms[2:]: A(f"v_max_f32 v{M}, v{M}, v{m}")
        for m, f in zip(ms, fs): A(f"v_sub_f32 v{f}, v{m}, v{M}")
        for f in fs: A(f"v_mul_f32 v{f}, s{self.sC}, v{f}")
        for f in fs: A(f"v_exp_f32 v{f}, v{f}")
        A("s_nop 0")

    def endgame(self):
        A = self.A; T = self.vT
        O, CR, vA, ST, G, G2 = self.vO, self.vCR, self.vA, self.vST, self.G, self.G2
        F = self.vS; NC = self.vVF; E = self.sE; N = self.sNOW
        sTK, sDN = self.sX, self.sY
        A("s_waitcnt lgkmcnt(0)")
        A(f"v_readfirstlane_b32 s{sTK}, v{self.vTK}")
        A("s_nop 7", "MFMA results -> VALU")
        self.C("spread the partial over all lanes: lane (q+8h, g) keeps the 16 values of d-half h")
        for i in range(16): self.dpp_hi(O+i, O+16+i)
        self.st(4)
        A(f"s_cmp_eq_u32 s{sTK}, 3")
        A("s_cbranch_scc1 L_last")
        self.C("early arriver: deposit O-corr, m, l in LDS slot [ticket]")
        for i in range(16): A(f"v_sub_f32 v{O+i}, v{O+i}, v{CR+(i&3)}")
        A(f"s_lshl_b32 s{sDN}, s{sTK}, 12")
        A(f"v_add_u32 v{T}, s{sDN}, v{self.vLT}")
        A(f"s_lshl_b32 s{sDN}, s{sTK}, 6")
        A(f"v_add_u32 v{T+1}, s{sDN}, v{self.vQ8}")
        A(f"v_mov_b32 v{T+2}, 1")
        for j in range(4):
            A(f"ds_write_b128 v{T}, v[{O+4*j}:{O+4*j+3}] offset:{self.SL+j*1024}")
        A(f"ds_write_b64 v{T+1}, v[{self.vM}:{self.vLs}] offset:{self.SS}")
        A("s_waitcnt lgkmcnt(0)")
        A("s_mov_b64 exec, 1")
        A(f"ds_add_u32 v{self.vZ}, v{T+2} offset:{self.CTL+4}", "done++")
        A("s_branch L_exit")
        self.label("L_last")
        A(f"v_readfirstlane_b32 s{sDN}, v{ST+9}")
        A(f"s_or_b32 s{E}, s{N+1}, s{self.sMY}")
        A(f"v_mov_b32 v{T}, s{N}")
        A(f"v_mov_b32 v{T+1}, s{E}")
        self.C("announce: swap my stamp into the pair word and read the partner's slot while merging locally;")
        self.C("whoever finds the other's stamp finishes the row block; the tags tell when the other's data has landed")
        A("s_mov_b64 exec, 1")
        A(f"buffer_atomic_swap_x2 v[{T}:{T+1}], v{self.vZ}, s[{self.sWS}:{self.sWS+3}], s{self.sPW} offen sc0 sc1")
        A("s_mov_b64 exec, -1")
        self.gl_partial("load", self.sPS, G2)
        A(f"s_cmp_eq_u32 s{sDN}, 3", "the other three waves took their tickets earlier and are depositing")
        A("s_cbranch_scc1 L_have3")
        self.label("L_respin")
        A(f"ds_read_b32 v{T+2}, v{self.vZ} offset:{self.CTL+4}")
        A("s_waitcnt lgkmcnt(0)")
        A(f"v_readfirstlane_b32 s{sDN}, v{T+2}")
        A(f"s_cmp_eq_u32 s{sDN}, 3")
        A("s_cbranch_scc0 L_respin")
        self.rd_slots()
        A("s_waitcnt lgkmcnt(0)")
        self.label("L_have3")
        self.mark(2)
        self.C("merge own + 3 wave partials into the payload registers (unnormalised, with M and L)")
        M, Lr = self.pl(16), self.pl(17)
        self.factors([self.vM] + [ST+2*w for w in range(3)], [F+k for k in range(4)], M)
        A(f"v_mul_f32 v{Lr}, v{F}, v{self.vLs}")
        for w in range(3): A(f"v_fmac_f32 v{Lr}, v{F+1+w}, v{ST+2*w+1}")
        for r in range(4): A(f"v_mul_f32 v{NC+r}, v{F}, v{CR+r}")
        for i in range(16): A(f"v_fma_f32 v{O+i}, v{F}, v{O+i}, -v{NC+(i&3)}")
        for w in range(2):
            for i in range(16): A(f"v_fmac_f32 v{O+i}, v{F+1+w}, v{vA+w*16+i}")
        for i in range(16): A(f"v_fma_f32 v{self.pl(i)}, v{F+3}, v{vA+32+i}, v{O+i}")
        for k in range(6): A(f"v_mov_b32 v{G[k]+3}, s{N}")
        A("s_waitcnt vmcnt(6)")
        self.C("old pair word = partner's tag bits + a stamp within (-2^24, 2^27-2^24) ticks of mine?  Only the two workgroups of")
        self.C("this (b,hkv) write the word and the finisher clears it, so anything else (zero, harness fill) fails the test")
        A(f"v_readfirstlane_b32 s{sTK}, v{T}")
        A(f"v_readfirstlane_b32 s{E+1}, v{T+1}")
        A(f"s_xor_b32 s{E+1}, s{E+1}, s{self.sPB}")
        A(f"s_sub_u32 s{E}, s{N}, s{sTK}")
        A(f"s_subb_u32 s{E+1}, s{N+1}, s{E+1}")
        A(f"s_add_u32 s{E}, s{E}, 0x1000000")
        A(f"s_addc_u32 s{E+1}, s{E+1}, 0")
        A(f"s_lshr_b32 s{E}, s{E}, 27")
        A(f"s_or_b32 s{E}, s{E}, s{E+1}")
        A("s_cbranch_scc0 L_second")
        self.C("first of the pair: publish the tagged partial (write-through) and leave")
        self.gl_partial("store", self.sMS, G)
        A("s_branch L_exit")
        self.label("L_second")
        A(f"v_mov_b32 v{T+2}, s{sTK}", "partner's tag")
        A(f"v_mov_b32 v{T}, 0"); A(f"v_mov_b32 v{T+1}, 0")
        A("s_mov_b64 exec, 1")
        A(f"buffer_store_dwordx2 v[{T}:{T+1}], v{self.vZ}, s[{self.sWS}:{self.sWS+3}], s{self.sPW} offen sc0 sc1", "hand-off consumed: clear the pair word")
        A("s_mov_b64 exec, -1")
        A("s_waitcnt vmcnt(1)")
        self.label("L_retag")
        for k in range(6):
            A(f"v_cmp_ne_u32 vcc, v{T+2}, v{G2[k]+3}")
            A(f"s_or_b64 s[{E}:{E+1}], vcc, " + ("vcc" if k == 0 else f"s[{E}:{E+1}]"))
        A("s_cbranch_scc0 L_merge")
        self.mark(3)
        self.C("the partner has announced and is about to store (it never waits for anybody): read again")
        self.gl_partial("load", self.sPS, G2)
        A("s_waitcnt vmcnt(0)")
        A("s_branch L_retag")
        self.label("L_merge")
        self.factors([M, self.pl(16, G2)], [F, F+1], F+2)
        A(f"v_mul_f32 v{Lr}, v{F}, v{Lr}")
        A(f"v_fmac_f32 v{Lr}, v{F+1}, v{self.pl(17, G2)}")
        A(f"v_rcp_f32 v{Lr}, v{Lr}")
        A("s_nop 0")
        for k in range(2): A(f"v_mul_f32 v{F+k}, v{F+k}, v{Lr}")
        for i in range(16): A(f"v_mul_f32 v{O+i}, v{F}, v{self.pl(i)}")
        for i in range(16): A(f"v_fmac_f32 v{O+i}, v{F+1}, v{self.pl(i, G2)}")
        W = self.vQB + 8
        self.C("lane (q+8h, g) holds out[q][64h+16g+4r+c] in register c*4+r")
        for r in range(4):
            for cp in range(2):
                A(f"v_cvt_pk_bf16_f32 v{W+r*2+cp}, v{O+(2*cp)*4+r}, v{O+(2*cp+1)*4+r}")
        for k in range(2):
            A(f"buffer_store_dwordx4 v[{W+k*4}:{W+k*4+3}], v{self.vOUT}, s[{self.sOUT}:{self.sOUT+3}], s{self.sOB} offen offset:{k*16}")

    def build(self):
        A = self.A; T = self.vT
        P = self.L.append
        P(HEADER.rstrip("\n"))
        P(f"; @launch grid=(256,1,1) block=(256,1,1) lds={max(self.LDS, self.ldsmin)}")
        P(DOC)
        P('.amdgcn_target "amdgcn-amd-amdhsa--gfx950"')
        P(".text"); P(f".globl {KNAME}"); P(".p2align 8"); P(f".type {KNAME},@function"); P(f"{KNAME}:")
        A("s_cmp_ge_u32 s2, 256", "extra workgroups exit")
        A("s_cbranch_scc1 L_end")
        A("s_load_dwordx16 s[4:19], s[0:1], 0", "q qk qv ks kz vs vz out")
        A("s_load_dwordx4 s[20:23], s[0:1], 64", "debug ws")
        self.st(0)
        if self.stamp:
            for k in range(1, 7): A(f"s_mov_b32 s{80+2*k}, 0")
        A(f"v_lshrrev_b32 v{T}, 6, v0")
        A(f"v_and_b32 v{self.vLANE}, 63, v0")
        if self.far:
            A(f"s_and_b32 s{self.sBH}, s2, 127"); A(f"s_lshr_b32 s{self.sHALF}, s2, 7")
        else:
            A(f"s_lshr_b32 s{self.sBH}, s2, 1", "(b,hkv)")
            A(f"s_and_b32 s{self.sHALF}, s2, 1")
        A(f"v_readfirstlane_b32 s{self.sW}, v{T}", "wave id")
        n_, g_ = T+1, T+2
        A(f"v_and_b32 v{n_}, 15, v{self.vLANE}")
        A(f"v_lshrrev_b32 v{g_}, 4, v{self.vLANE}")
        self.C("K lane offset: row 8*(n>>2) + ((n>>1)&1), byte (n&1)*64 + g*16")
        A(f"v_lshrrev_b32 v{T+3}, 2, v{n_}")
        A(f"v_lshlrev_b32 v{self.vOK}, 12, v{T+3}")
        A(f"v_bfe_u32 v{T+3}, v{n_}, 1, 1")
        A(f"v_lshl_add_u32 v{self.vOK}, v{T+3}, 9, v{self.vOK}")
        A(f"v_and_b32 v{T+3}, 1, v{n_}")
        A(f"v_lshl_add_u32 v{self.vOK}, v{T+3}, 6, v{self.vOK}")
        A(f"v_lshl_add_u32 v{self.vOK}, v{g_}, 4, v{self.vOK}")
        A(f"v_lshlrev_b32 v{T+4}, 5, v{T+3}")
        A(f"v_lshl_add_u32 v{T+4}, v{g_}, 3, v{T+4}", "kz (A layout): (n&1)*32 + g*8")
        A(f"v_lshrrev_b32 v{T+3}, 3, v{n_}")
        A(f"v_lshlrev_b32 v{T+5}, 5, v{T+3}")
        A(f"v_lshl_add_u32 v{T+5}, v{g_}, 3, v{T+5}", "ks (B layout): (n>>3)*32 + g*8")
        A(f"v_and_b32 v{T+3}, 7, v{n_}")
        A(f"v_lshl_add_u32 v{T+6}, v{T+3}, 8, v{T+5}", "q (B layout): + (n&7)*256")
        A(f"v_lshlrev_b32 v{self.vOV}, 12, v{g_}")
        A(f"v_lshl_add_u32 v{self.vOV}, v{n_}, 4, v{self.vOV}", "V lane offset: row 8g, byte n*16")
        A(f"v_lshl_add_u32 v{self.vOS}, v{g_}, 2, v{T}")
        A(f"v_lshlrev_b32 v{self.vOS}, 2, v{self.vOS}")
        A(f"v_add_u32 v{self.vOS}, 5120, v{self.vOS}", "5120 + (4g+wave)*4: scale dwords inside a table entry")
        A(f"v_lshlrev_b32 v{self.vLT}, 4, v{self.vLANE}")
        A(f"v_lshlrev_b32 v{T+3}, 9, v{g_}")
        A(f"v_lshl_add_u32 v{T+3}, v{n_}, 4, v{T+3}", "(L>>4)*512 + (L&15)*16")
        A(f"s_mov_b32 s{self.sMASK}, 0x00ff00ff", "lanes that carry a query row")
        A(f"s_mov_b32 s{self.sMASK+1}, 0x00ff00ff")
        A(f"s_mov_b32 s{self.sC}, {f32hex(C_SCALE)}")
        A(f"s_mov_b32 s{self.sNC}, {f32hex(-C_SCALE)}")
        X, Y, Z = self.sX, self.sY, self.sZ
        A(f"s_lshl_b32 s{self.sOFF}, s{self.sBH}, 20")
        A(f"s_lshl_b32 s{X}, s{self.sHALF}, 16")
        A(f"s_add_u32 s{self.sOFF}, s{self.sOFF}, s{X}")
        A(f"s_lshl_b32 s{X}, s{self.sW}, 10")
        A(f"s_add_u32 s{self.sOFF}, s{self.sOFF}, s{X}", "(b,hkv) base + half*64K + wave*1K")
        if self.rot: A(f"s_bfe_u32 s{self.sSTEP}, s2, 0x30003", "start round (wg>>3)&7")
        else: A(f"s_mov_b32 s{self.sSTEP}, 0")
        self.set_step_offsets()
        A(f"s_lshl_b32 s{X}, s{self.sBH}, 12"); A(f"s_lshl_b32 s{Y}, s{self.sHALF}, 8"); A(f"s_add_u32 s{X}, s{X}, s{Y}")
        A(f"s_lshl_b32 s{Y}, s{self.sBH}, 11")
        A(f"s_cmp_lg_u32 s{self.sW}, 0"); A(f"s_cselect_b32 s{Y}, 0x40000, s{Y}", "only wave 0 reads q (the others are out of range: no access)")
        A("s_waitcnt lgkmcnt(0)")
        if self.stamp == 1: self.st(1)
        RAW = self.SL
        self.C("small inputs, two wide loads per array: wave 0 v_zeros + q, wave 1 k_scales, wave 2 k_zeros, wave 3 v_scales;")
        self.C("lane L reads 16 B of round L>>4 (+4), i.e. of group 2*round+half")
        W0 = self.sWS
        A(f"s_cmp_eq_u32 s{self.sW}, 1"); A(f"s_cselect_b32 s{W0}, s10, s16"); A(f"s_cselect_b32 s{W0+1}, s11, s17")
        A(f"s_cmp_eq_u32 s{self.sW}, 2"); A(f"s_cselect_b32 s{W0}, s12, s{W0}"); A(f"s_cselect_b32 s{W0+1}, s13, s{W0+1}")
        A(f"s_cmp_eq_u32 s{self.sW}, 3"); A(f"s_cselect_b32 s{W0}, s14, s{W0}"); A(f"s_cselect_b32 s{W0+1}, s15, s{W0+1}")
        A(f"s_and_b32 s{W0+1}, s{W0+1}, 0xffff")
        A(f"s_mov_b32 s{W0+2}, {8*16*2048*2}", "all four arrays have 524288 bytes")
        A(f"s_mov_b32 s{W0+3}, 0x20000")
        A(f"buffer_load_dwordx4 v[36:39], v{T+3}, s[{W0}:{W0+3}], s{X} offen")
        A(f"buffer_load_dwordx4 v[40:43], v{T+3}, s[{W0}:{W0+3}], s{X} offen offset:2048")
        self.srd(self.sQ, 4, 8*32*4*128*2, "q")
        A(f"buffer_load_dwordx4 v[44:47], v{self.vLT}, s[{self.sQ}:{self.sQ+3}], s{Y} offen")
        A(f"buffer_load_dwordx4 v[48:51], v{self.vLT}, s[{self.sQ}:{self.sQ+3}], s{Y} offen offset:1024")
        self.srd(self.sK, 6, 0x8000000, "qk")
        defer = self.capture(lambda: (self.ld_k(), self.ld_v()))
        for _ in range(self.n0): P(defer.pop(0))
        self.srd(self.sV, 8, 0x8000000, "qv")
        cnt = [0]
        def B(x):
            A(x); cnt[0] += 1
            if len(defer) > self.keep and cnt[0] % self.gap == 0: self.L.append(defer.pop(0))
        for k in range(32): A(f"v_mov_b32 v{self.vO+k}, 0")
        for k in range(4): A(f"v_mov_b32 v{self.vCR+k}, 0")
        A(f"v_mov_b32 v{self.vM}, 0xff800000")
        A(f"v_mov_b32 v{self.vLs}, 0")
        self.C("LDS destination: ks/kz -> raw staging [round][256 B]; vs/vz -> table entry [round] + 5120 / 5376")
        A(f"s_add_u32 s{Z}, s{self.sW}, 1"); A(f"s_and_b32 s{Z}, s{Z}, 2", "2 for waves 1,2 (raw), 0 for waves 3,0 (table)")
        A(f"s_mov_b32 s{X}, {self.ENT}")
        A(f"s_cmp_lg_u32 s{Z}, 0")
        A(f"s_cselect_b32 s{X}, 256, s{X}", "round stride")
        A(f"s_lshl_b32 s{Y}, s{self.sW}, 11"); A(f"s_add_u32 s{Y}, s{Y}, {RAW}", "raw base of waves 1,2")
        A(f"s_cmp_eq_u32 s{self.sW}, 3"); A(f"s_cselect_b32 s{Y}, 5120, s{Y}")
        A(f"s_cmp_eq_u32 s{self.sW}, 0"); A(f"s_cselect_b32 s{Y}, 5376, s{Y}")
        A(f"v_mul_lo_u32 v{T+3}, v{g_}, s{X}")
        A(f"v_lshl_add_u32 v{T+3}, v{n_}, 4, v{T+3}")
        A(f"v_add_u32 v{T+3}, s{Y}, v{T+3}")
        A(f"s_lshl_b32 s{X}, s{X}, 2")
        A(f"v_add_u32 v{T+7}, s{X}, v{T+3}")
        A("v_mov_b32 v52, 0"); A("v_mov_b32 v53, 0")
        A(f"ds_write_b64 v52, v[52:53] offset:{self.CTL}", "ticket = done = 0")
        A(f"s_waitcnt vmcnt({self.n0 + 2})")
        A(f"ds_write_b128 v{T+3}, v[36:39]")
        A(f"ds_write_b128 v{T+7}, v[40:43]")
        A(f"s_waitcnt vmcnt({self.n0})")
        A(f"s_cmp_lg_u32 s{self.sW}, 0")
        A("s_cbranch_scc1 L_noq")
        A(f"ds_write_b128 v{self.vLT}, v[44:47] offset:{RAW}")
        A(f"ds_write_b128 v{self.vLT}, v[48:51] offset:{RAW+1024}")
        self.label("L_noq")
        A("s_waitcnt lgkmcnt(0)")
        A("s_barrier")
        self.C("table build: B operands bf16(q*ks) hi/lo and C0 = -(q*ks).kz for rounds 2w, 2w+1")
        KSZ = 48
        for i in range(4): A(f"ds_read_b64 v[{16+2*i}:{17+2*i}], v{T+6} offset:{RAW+64*i}")
        A(f"s_lshl_b32 s{X}, s{self.sW}, 9")
        A(f"v_add_u32 v{T+5}, s{X}, v{T+5}")
        A(f"v_add_u32 v{T+4}, s{X}, v{T+4}")
        for gi in range(2):
            for i in range(4):
                r = KSZ + gi*16 + 2*i
                A(f"ds_read_b64 v[{r}:{r+1}], v{T+5} offset:{RAW+2048+gi*256+64*i}")
            for i in range(4):
                r = KSZ + gi*16 + 8 + 2*i
                A(f"ds_read_b64 v[{r}:{r+1}], v{T+4} offset:{RAW+4096+gi*256+64*i}")
        A(f"s_mul_i32 s{Z}, s{self.sW}, {2*self.ENT}")
        A(f"v_add_u32 v{T+7}, s{Z}, v{self.vLT}")
        A("s_waitcnt lgkmcnt(0)")
        QF = list(range(116, 124)) + list(range(252, 256)) + list(range(44, 48))
        for k in range(8):
            B(f"v_lshlrev_b32 v{QF[2*k]}, 16, v{16+k}")
            B(f"v_and_b32 v{QF[2*k+1]}, 0xffff0000, v{16+k}")
        QB = self.vQB
        for gi in range(2):
            KS = KSZ + gi*16; KZ = KS + 8
            for k in range(8):
                t0, t1, t2, t3 = T, T+1, T+2, T+3
                B(f"v_lshlrev_b32 v{t0}, 16, v{KS+k}")
                B(f"v_and_b32 v{t1}, 0xffff0000, v{KS+k}")
                B(f"v_mul_f32 v{t0}, v{t0}, v{QF[2*k]}")
                B(f"v_mul_f32 v{t1}, v{t1}, v{QF[2*k+1]}")
                B(f"v_cvt_pk_bf16_f32 v{QB+k}, v{t0}, v{t1}")
                B(f"v_lshlrev_b32 v{t2}, 16, v{QB+k}")
                B(f"v_and_b32 v{t3}, 0xffff0000, v{QB+k}")
                B(f"v_sub_f32 v{t0}, v{t0}, v{t2}")
                B(f"v_sub_f32 v{t1}, v{t1}, v{t3}")
                B(f"v_cvt_pk_bf16_f32 v{QB+8+k}, v{t0}, v{t1}")
            for k in range(8):
                B(f"v_xor_b32 v{KZ+k}, 0x80008000, v{KZ+k}")
            A("s_nop 1")
            C0 = QB+16
            self.mfma(C0, KZ, QB, None)
            self.mfma(C0, KZ+4, QB+4, C0)
            self.mfma(C0, KZ, QB+8, C0)
            self.mfma(C0, KZ+4, QB+12, C0)
            for it in range(4):
                A(f"ds_write_b128 v{T+7}, v[{QB+it*4}:{QB+it*4+3}] offset:{gi*self.ENT+it*1024}")
            A("s_nop 7")
            A(f"ds_write_b128 v{T+7}, v[{C0}:{C0+3}] offset:{gi*self.ENT+4096}")
            A("s_waitcnt lgkmcnt(0)")
        while len(defer) > 16: self.L.append(defer.pop(0))
        A("s_barrier")
        self.st(2)
        self.rd_qb()
        A(f"s_mov_b32 s{self.sCNT}, 7")
        self.kphase(defer)
        self.label("L_loop")
        A(f"s_add_u32 s{self.sSTEP}, s{self.sSTEP}, 1")
        A(f"s_and_b32 s{self.sSTEP}, s{self.sSTEP}, 7")
        self.set_step_offsets()
        self.svphase(True)
        self.kphase()
        A(f"s_sub_u32 s{self.sCNT}, s{self.sCNT}, 1")
        A(f"s_cmp_lg_u32 s{self.sCNT}, 0")
        A("s_cbranch_scc1 L_loop")
        self.endgame_setup()
        self.svphase(False)
        self.st(3)
        self.endgame()
        if self.stamp:
            A("s_waitcnt vmcnt(0)")
            self.st(6)
            self.label("L_exit")
            self.st_dump()
        else:
            self.label("L_exit")
        self.label("L_end")
        A("s_endpgm")
        P = self.L.append
        P('.section .rodata,"a"'); P(".p2align 6"); P(f".amdhsa_kernel {KNAME}")
        P(f"  .amdhsa_next_free_vgpr {self.NV}")
        P(f"  .amdhsa_next_free_sgpr {100 if self.stamp else 80}")
        P(f"  .amdhsa_accum_offset {self.NV}")
        P("  .amdhsa_group_segment_fixed_size 0")
        P("  .amdhsa_kernarg_size 80")
        P("  .amdhsa_user_sgpr_count 2")
        P("  .amdhsa_user_sgpr_kernarg_segment_ptr 1")
        P("  .amdhsa_system_sgpr_workgroup_id_x 1")
        P("  .amdhsa_float_denorm_mode_32 3")
        P(".end_amdhsa_kernel")
        return "\n".join(self.L) + "\n"

if __name__ == "__main__":
    out = sys.argv[1]
    kw = {}
    for a in sys.argv[2:]:
        k, v = a.split("=")
        kw[k] = int(v) if v.lstrip("-").isdigit() else v
    open(out, "w").write(Gen(**kw).build())
```

```python
import struct, sys

KNAME = "standalone__kv_cache_quant_int4_int2_kv_with_per_channel_or_per_token_scales__sampling_kernel"
HEADER = open("standalone__kv_cache_quant_int4_int2_kv_with_per_channel_or_per_token_scales__sampling.s.ref").read().split("; Override launch")[0]

DOC = """;
;
;
; one buffer at a time (mixing both costs ~8% of HBM rate when the two buffers sit in different DRAM ranks).
;"""

def f32hex(x):
    return "0x%08x" % struct.unpack("<I", struct.pack("<f", x))[0]

C_SCALE = (128.0 ** -0.5) * 1.4426950408889634

class Gen:
    def __init__(self, stamp=0, rot=1, thr=5566, gk=8, gv=9, n0=16, gap=24, keep=8, far=0, ldsmin=0, pthr=0, n1=0, thrv=None):
        self.stamp = stamp; self.rot = rot; self.thr = thr; self.gk = gk; self.gv = gv
        self.n0 = n0; self.gap = gap; self.keep = keep; self.far = far; self.ldsmin = ldsmin; self.pthr = pthr; self.thrv = thr if thrv is None else thrv; self.n1 = n1
        self.L = []; self.lbl = 0
        self.pq = None; self.hold = False; self.since = 0; self.nseq = 0; self.nload = 0; self.gi = gk

    def A(self, s, c=None):
        self.L.append("  " + s + (f"    ; {c}" if c else ""))
        if self.pq is not None and not self.hold:
            self.since += 1
            if self.pq and self.since >= self.gi: self.emit_one()
    def emit_one(self):
        line = self.pq.pop(0)
        if self.thr:
            pat = str(self.thrv if f"s[{self.sV}:" in line else self.thr); t = int(pat[self.nload % len(pat)]); self.nload += 1
            self.L.append(f"  s_waitcnt vmcnt({t-1})")
        self.L.append(line); self.nseq += 1; self.since = 0
    def capture(self, fn):
        save, pq = self.L, self.pq
        self.L, self.pq = [], None
        fn()
        lines, self.L, self.pq = self.L, save, pq
        return lines
    def C(self, c): self.L.append(f"  ; {c}")
    def label(self, s): self.L.append(s + ":")
    def newlabel(self, p):
        self.lbl += 1
        return f"{p}_{self.lbl}"

    vLANE = 1; vOK = 2; vOV = 3; vOS = 4; vLT = 5
    vT = 6
    vM = 14; vLs = 15; vNM = 255
    vQB = 16
    vD = 36
    vS = 52
    vVF = 60
    vPB = 68
    OPV = [36, 40, 44, 48, 60, 64, 72, 76]
    vO = 80
    vCR = 112
    vVS = 116; vVZ = 120
    RB = [124, 188]
    vSA = 254
    vQ8 = 2; vZ = 3; vGS = 4; vOUT = 252; vTK = 253
    vA = 124
    vST = 24
    G = [172, 176, 180, 184, 16, 20]
    G2 = [188, 192, 196, 200, 204, 208]
    def pl(self, p, G=None): return (G or self.G)[p//3] + p % 3
    NV = 256
    sK = 24; sV = 28; sWS = 40; sQ = 64; sOUT = 68
    sMASK = 44; sC = 46; sNC = 47
    sW = 48; sBH = 49; sHALF = 50; sOFF = 51; sCNT = 53; sSTEP = 54
    sX = 55; sY = 56; sZ = 57; sE = 58; sLQ = 60; sCUR = 52
    sPW = 61; sMY = 62; sPB = 63; sNOW = 64; sMS = 72; sPS = 73; sOB = 74
    sTA = 76
    ENT = 5632
    SL = 8*ENT; SS = SL + 3*4096; CTL = SS + 3*64; SB = CTL + 64; LDS = SB + 4*8192
    PWOFF = 7168

    def st(self, k):
        if self.stamp: self.A(f"s_memrealtime s[{80+2*k}:{81+2*k}]")
    def mark(self, x):
        if self.stamp == 8: self.A(f"s_mov_b32 s82, {x}")
    def st_dump(self):
        A = self.A
        A("s_mov_b64 exec, -1"); A("s_getreg_b32 s96, hwreg(HW_REG_XCC_ID)"); A("s_waitcnt lgkmcnt(0)")
        self.srd(24, 22, 0x1000000)
        A("s_lshl_b32 s97, s2, 2"); A(f"s_add_u32 s97, s97, s{self.sW}")
        A("s_lshl_b32 s97, s97, 6"); A("s_add_u32 s97, s97, 0x400000")
        for k in range(8):
            A(f"v_mov_b32 v{248+(k&3)}, s{80+2*k}" if k < 7 else f"v_mov_b32 v{248+(k&3)}, s96")
            if k & 3 == 3:
                A("v_mov_b32 v247, 0"); A("s_mov_b64 exec, 1")
                A(f"buffer_store_dwordx4 v[248:251], v247, s[24:27], s97 offen offset:{(k>>2)*16}")
                A("s_mov_b64 exec, -1"); A("s_nop 1")

    def srd(self, d, ptr, nbytes, c=None):
        self.A(f"s_mov_b32 s{d}, s{ptr}", c)
        self.A(f"s_and_b32 s{d+1}, s{ptr+1}, 0xffff")
        self.A(f"s_mov_b32 s{d+2}, {nbytes}")
        self.A(f"s_mov_b32 s{d+3}, 0x20000")
    def ld_k(self, B):
        for a in range(4):
            for i in range(4):
                r = B + a*16 + i*4
                self.A(f"buffer_load_dwordx4 v[{r}:{r+3}], v{self.vOK}, s[{self.sK}:{self.sK+3}], s{self.sTA+a} offen offset:{i*128} nt")
    def ld_v(self, B):
        for u in range(2):
            for j in range(8):
                a, b, h = 2*u + (j >> 2), (j >> 1) & 1, j & 1
                r = B + u*32 + j*4
                self.A(f"buffer_load_dwordx4 v[{r}:{r+3}], v{self.vOV}, s[{self.sV}:{self.sV+3}], s{self.sTA+a} offen offset:{b*512+h*256} nt")
    def next_round(self):
        self.A(f"s_lshl_b32 s{self.sCUR}, s{self.sSTEP}, 10", "S record block of the round being processed")
        self.A(f"s_add_u32 s{self.sSTEP}, s{self.sSTEP}, 1")
        self.A(f"s_and_b32 s{self.sSTEP}, s{self.sSTEP}, 7")
        self.set_step_offsets()
    def rd_s(self):
        self.A(f"s_lshl_b32 s{self.sX}, s{self.sSTEP}, 10")
        self.A(f"v_add_u32 v{self.vT+4}, s{self.sX}, v{self.vSA}")
        self.A(f"ds_read_b128 v[{self.vS}:{self.vS+3}], v{self.vT+4}")
        self.A(f"ds_read_b128 v[{self.vS+4}:{self.vS+7}], v{self.vT+4} offset:16")
        self.rd_sz()
    def rd_qb(self):
        self.A(f"v_add_u32 v{self.vT}, s{self.sLQ}, v{self.vLT}")
        for it in range(5):
            r = self.vQB + it*4
            self.A(f"ds_read_b128 v[{r}:{r+3}], v{self.vT} offset:{it*1024}")
    def rd_sz(self):
        self.A(f"v_add_u32 v{self.vT+3}, s{self.sLQ}, v{self.vOS}")
        for base, r in ((0, self.vVS), (64, self.vVZ)):
            self.A(f"ds_read2_b32 v[{r}:{r+1}], v{self.vT+3} offset0:{base} offset1:{base+16}", "v_scales (token pairs of tiles 0,1)" if base == 0 else "v_zeros")
            self.A(f"ds_read2_b32 v[{r+2}:{r+3}], v{self.vT+3} offset0:{base+32} offset1:{base+48}")
    def set_step_offsets(self):
        self.A(f"s_lshl_b32 s{self.sTA}, s{self.sSTEP}, 17")
        self.A(f"s_add_u32 s{self.sTA}, s{self.sTA}, s{self.sOFF}", "K/V byte offset of tile 0 of the round")
        for a in range(1, 4):
            self.A(f"s_add_u32 s{self.sTA+a}, s{self.sTA}, {a*16384}")
        self.A(f"s_mul_i32 s{self.sLQ}, s{self.sSTEP}, {self.ENT}", "LDS table entry of the round")
    def xlane(self, op, x, t):
        self.A(f"v_mov_b32 v{t}, v{x}"); self.A("s_nop 1")
        self.A(f"v_permlane16_swap_b32 v{t}, v{x}")
        self.A(f"{op} v{x}, v{x}, v{t}")
        self.A(f"v_mov_b32 v{t}, v{x}"); self.A("s_nop 1")
        self.A(f"v_permlane32_swap_b32 v{t}, v{x}")
        self.A(f"{op} v{x}, v{x}, v{t}")
    def mfma(self, d, a, b, c):
        cs = "0" if c is None else f"v[{c}:{c+3}]"
        self.A(f"v_mfma_f32_16x16x32_bf16 v[{d}:{d+3}], v[{a}:{a+3}], v[{b}:{b+3}], {cs}")
    def dppadd(self, a):
        d = self.vD + a*4
        for b in range(2):
            self.A(f"v_add_f32_dpp v{self.vS+2*a+b}, v{d+2*b+1}, v{d+2*b} row_ror:8 row_mask:0xf bank_mask:0xf")
    def dpp_hi(self, dst, src):
        self.A(f"v_mov_b32_dpp v{dst}, v{src} row_ror:8 row_mask:0xf bank_mask:0xc")
    def rd_slots(self):
        A = self.A
        A(f"ds_read_b64 v[{self.vST+8}:{self.vST+9}], v{self.vZ} offset:{self.CTL}", "ticket, done (read first: LDS ops of a wave are ordered)")
        for w in range(3):
            A(f"ds_read_b64 v[{self.vST+2*w}:{self.vST+2*w+1}], v{self.vQ8} offset:{self.SS+w*64}")
        for w in range(3):
            for j in range(4):
                r = self.vA + w*16 + j*4
                A(f"ds_read_b128 v[{r}:{r+3}], v{self.vLT} offset:{self.SL+w*4096+j*1024}")

    def kround(self, B, nxt, rest=None):
        A = self.A; T = self.vT; S = self.vS
        QB = self.vQB
        Bhi0, Bhi1, Blo0, Blo1, C0 = QB, QB+4, QB+8, QB+12, QB+16
        O = self.RB[1] if B == self.RB[0] else self.RB[0]
        self.nseq = 0; self.since = 0; self.gi = self.gk
        if rest is None:
            self.next_round()
            ld = self.capture(lambda: (self.ld_k if nxt == "K" else self.ld_v)(O))
        else: ld = rest
        pre = 16 - len(ld)
        self.pq = list(ld)
        for a in range(4):
            n = (3 - a)*4 + pre + self.nseq
            self.C(f"K tile {a}: int32 -> bf16, hi + lo MFMAs, accumulator starts at -(q*ks).kz")
            A(f"s_waitcnt vmcnt({n}) lgkmcnt(0)" if a == 0 else f"s_waitcnt vmcnt({n})")
            R = B + a*16
            for k in range(16): A(f"v_cvt_f32_i32 v{R+k}, v{R+k}")
            for mm in range(2):
                for k in range(4):
                    A(f"v_cvt_pk_bf16_f32 v{R+mm*8+k}, v{R+mm*8+2*k}, v{R+mm*8+2*k+1}")
            if a > 0: self.dppadd(a-1)
            else: A("s_nop 1")
            D = self.vD + a*4
            self.mfma(D, R, Bhi0, C0)
            self.mfma(D, R+8, Bhi1, D)
            self.mfma(D, R, Blo0, D)
            self.mfma(D, R+8, Blo1, D)
        if nxt == "K": self.rd_qb()
        else: A("s_nop 3")
        A(f"v_add_u32 v{T+1}, s{self.sCUR}, v{self.vSA}")
        A(f"v_max3_f32 v{self.vM}, v{self.vM}, v{S}, v{S+1}")
        A(f"v_max3_f32 v{self.vM}, v{self.vM}, v{S+2}, v{S+3}")
        A(f"v_max3_f32 v{self.vM}, v{self.vM}, v{S+4}, v{S+5}")
        self.dppadd(3)
        A(f"v_max3_f32 v{self.vM}, v{self.vM}, v{S+6}, v{S+7}", "per-lane running max")
        self.hold = True
        A(f"s_mov_b64 exec, s[{self.sMASK}:{self.sMASK+1}]")
        A(f"ds_write_b128 v{T+1}, v[{S}:{S+3}]", "park S until the V phase")
        A(f"ds_write_b128 v{T+1}, v[{S+4}:{S+7}] offset:16")
        A("s_mov_b64 exec, -1")
        self.hold = False
        while self.pq: self.emit_one()
        self.pq = None

    def vround(self, B, last=False):
        A = self.A; T = self.vT; S = self.vS
        O = self.RB[1] if B == self.RB[0] else self.RB[0]
        self.nseq = 0; self.since = 0; self.gi = self.gv
        if not last:
            self.next_round()
            self.pq = self.capture(lambda: self.ld_v(O))
        self.C("p = exp2((S-m)*c), l += p, P operand = bf16(p*vs), corr += P.vz")
        A("s_waitcnt lgkmcnt(0)")
        for j in range(8): A(f"v_fma_f32 v{S+j}, v{S+j}, s{self.sC}, v{self.vNM}")
        for j in range(8): A(f"v_exp_f32 v{S+j}, v{S+j}")
        VF = self.vVF
        for k in range(4):
            A(f"v_lshlrev_b32 v{VF+2*k}, 16, v{self.vVS+k}")
            A(f"v_and_b32 v{VF+2*k+1}, 0xffff0000, v{self.vVS+k}")
        for j in range(8): A(f"v_add_f32 v{self.vLs}, v{self.vLs}, v{S+j}")
        for j in range(8): A(f"v_mul_f32 v{S+j}, v{S+j}, v{VF+j}")
        for a in range(4): A(f"v_cvt_pk_bf16_f32 v{self.vPB+a}, v{S+2*a}, v{S+2*a+1}")
        A("s_nop 1")
        self.mfma(self.vCR, self.vVZ, self.vPB, self.vCR)
        if last:
            self.C("l, corr are final: sum l over the lane groups")
            self.xlane("v_add_f32", self.vLs, T)
        else:
            self.rd_s()
        for un in range(2):
            self.C(f"V tiles {2*un},{2*un+1}: int32 -> bf16" + (", O^T += V^T (p*vs)^T" if un else ""))
            A(f"s_waitcnt vmcnt({(1-un)*8 + self.nseq})")
            if last and un == 1:
                self.C("all data of this wave has arrived: take the merge ticket, read the merge state early")
                A(f"v_mov_b32 v{self.vTK}, 1")
                A("s_mov_b64 exec, 1")
                A(f"ds_add_rtn_u32 v{self.vTK}, v{self.vZ}, v{self.vTK} offset:{self.CTL}")
                A("s_mov_b64 exec, -1")
                self.rd_slots()
            R = B + un*32
            for k in range(32): A(f"v_cvt_f32_i32 v{R+k}, v{R+k}")
            def pk(hc):
                hh, c = hc >> 2, hc & 3
                for a2 in range(2):
                    A(f"v_cvt_pk_bf16_f32 v{self.OPV[hc]+2*un+a2}, v{R+(a2*4+hh)*4+c}, v{R+(a2*4+2+hh)*4+c}")
            def mf(hc):
                o = self.vO + hc*4
                self.mfma(o, self.OPV[hc], self.vPB, o)
            if un == 0:
                for hc in range(8): pk(hc)
            else:
                pk(0); pk(1)
                for hc in range(6):
                    mf(hc); pk(hc+2)
                mf(6); A("s_nop 0"); mf(7)
        if not last:
            while self.pq: self.emit_one()
            self.pq = None

    def endgame_setup(self):
        A = self.A; T = self.vT
        self.C("merge-phase addresses (the stream address registers are dead from here on)")
        self.srd(self.sWS, 22, 256*8192, "d_ws")
        self.srd(self.sOUT, 18, 8*32*4*128*2, "d_out")
        A(f"s_memrealtime s[{self.sNOW}:{self.sNOW+1}]", "launch-unique stamp: tags this launch's hand-off words in d_ws")
        A(f"s_lshl_b32 s{self.sMS}, s{self.sBH}, 1")
        A(f"s_add_u32 s{self.sMS}, s{self.sMS}, s{self.sHALF}")
        A(f"s_lshl_b32 s{self.sMS}, s{self.sMS}, 13", "my d_ws slot")
        A(f"s_xor_b32 s{self.sPS}, s{self.sMS}, 0x2000", "partner slot")
        A(f"s_lshl_b32 s{self.sPW}, s{self.sBH}, 14")
        A(f"s_add_u32 s{self.sPW}, s{self.sPW}, {self.PWOFF}", "pair word")
        A(f"s_lshl_b32 s{self.sMY}, s{self.sHALF}, 30")
        A(f"s_or_b32 s{self.sMY}, s{self.sMY}, 0x80000000", "tag bits of my pair-word value")
        A(f"s_xor_b32 s{self.sPB}, s{self.sMY}, 0x40000000", "tag bits of the partner's value")
        A(f"s_lshl_b32 s{self.sOB}, s{self.sBH}, 11", "output block")
        A(f"v_mov_b32 v{self.vZ}, 0")
        A(f"v_and_b32 v{T+1}, 7, v{self.vLANE}")
        A(f"v_lshlrev_b32 v{self.vQ8}, 3, v{T+1}", "q*8")
        A(f"v_add_u32 v{self.vGS}, 4096, v{self.vLT}", "lane*16 + 4096")
        A(f"v_lshrrev_b32 v{T+2}, 4, v{self.vLANE}")
        A(f"v_bfe_u32 v{T+3}, v{self.vLANE}, 3, 1")
        A(f"v_lshlrev_b32 v{self.vOUT}, 8, v{T+1}")
        A(f"v_lshl_add_u32 v{self.vOUT}, v{T+2}, 5, v{self.vOUT}")
        A(f"v_lshl_add_u32 v{self.vOUT}, v{T+3}, 7, v{self.vOUT}", "q*256 + h*128 + g*32")
    def gl_partial(self, op, slot, G):
        for k in range(6):
            va = self.vLT if k < 4 else self.vGS
            self.A(f"buffer_{op}_dwordx4 v[{G[k]}:{G[k]+3}], v{va}, s[{self.sWS}:{self.sWS+3}], s{slot} offen offset:{(k&3)*1024} sc0 sc1")
    def factors(self, ms, fs, M):
        A = self.A
        A(f"v_max_f32 v{M}, v{ms[0]}, v{ms[1]}")
        for m in ms[2:]: A(f"v_max_f32 v{M}, v{M}, v{m}")
        for m, f in zip(ms, fs): A(f"v_sub_f32 v{f}, v{m}, v{M}")
        for f in fs: A(f"v_mul_f32 v{f}, s{self.sC}, v{f}")
        for f in fs: A(f"v_exp_f32 v{f}, v{f}")
        A("s_nop 0")

    def endgame(self):
        A = self.A; T = self.vT
        O, CR, vA, ST, G, G2 = self.vO, self.vCR, self.vA, self.vST, self.G, self.G2
        F = self.vS; NC = self.vVF; E = self.sE; N = self.sNOW
        sTK, sDN = self.sX, self.sY
        A("s_waitcnt lgkmcnt(0)")
        A(f"v_readfirstlane_b32 s{sTK}, v{self.vTK}")
        A("s_nop 7", "MFMA results -> VALU")
        self.C("lanes q and q+8 hold the same row (both read the same S records): lane (q+8h, g) keeps d-half h")
        A(f"s_not_b64 exec, s[{self.sMASK}:{self.sMASK+1}]")
        for i in range(16): A(f"v_mov_b32 v{O+i}, v{O+16+i}")
        A("s_mov_b64 exec, -1")
        self.st(4)
        A(f"s_cmp_eq_u32 s{sTK}, 3")
        A("s_cbranch_scc1 L_last")
        self.C("early arriver: deposit O-corr, m, l in LDS slot [ticket]")
        for i in range(16): A(f"v_sub_f32 v{O+i}, v{O+i}, v{CR+(i&3)}")
        A(f"s_lshl_b32 s{sDN}, s{sTK}, 12")
        A(f"v_add_u32 v{T}, s{sDN}, v{self.vLT}")
        A(f"s_lshl_b32 s{sDN}, s{sTK}, 6")
        A(f"v_add_u32 v{T+1}, s{sDN}, v{self.vQ8}")
        A(f"v_mov_b32 v{T+2}, 1")
        for j in range(4):
            A(f"ds_write_b128 v{T}, v[{O+4*j}:{O+4*j+3}] offset:{self.SL+j*1024}")
        A(f"ds_write_b64 v{T+1}, v[{self.vM}:{self.vLs}] offset:{self.SS}")
        A("s_waitcnt lgkmcnt(0)")
        A("s_mov_b64 exec, 1")
        A(f"ds_add_u32 v{self.vZ}, v{T+2} offset:{self.CTL+4}", "done++")
        A("s_branch L_exit")
        self.label("L_last")
        A(f"v_readfirstlane_b32 s{sDN}, v{ST+9}")
        A(f"s_or_b32 s{E}, s{N+1}, s{self.sMY}")
        A(f"v_mov_b32 v{T}, s{N}")
        A(f"v_mov_b32 v{T+1}, s{E}")
        self.C("announce: swap my stamp into the pair word and read the partner's slot while merging locally;")
        self.C("whoever finds the other's stamp finishes the row block; the tags tell when the other's data has landed")
        A("s_mov_b64 exec, 1")
        A(f"buffer_atomic_swap_x2 v[{T}:{T+1}], v{self.vZ}, s[{self.sWS}:{self.sWS+3}], s{self.sPW} offen sc0 sc1")
        A("s_mov_b64 exec, -1")
        self.gl_partial("load", self.sPS, G2)
        A(f"s_cmp_eq_u32 s{sDN}, 3", "the other three waves took their tickets earlier and are depositing")
        A("s_cbranch_scc1 L_have3")
        self.label("L_respin")
        A(f"ds_read_b32 v{T+2}, v{self.vZ} offset:{self.CTL+4}")
        A("s_waitcnt lgkmcnt(0)")
        A(f"v_readfirstlane_b32 s{sDN}, v{T+2}")
        A(f"s_cmp_eq_u32 s{sDN}, 3")
        A("s_cbranch_scc0 L_respin")
        self.rd_slots()
        A("s_waitcnt lgkmcnt(0)")
        self.label("L_have3")
        self.mark(2)
        self.C("merge own + 3 wave partials into the payload registers (unnormalised, with M and L)")
        M, Lr = self.pl(16), self.pl(17)
        self.factors([self.vM] + [ST+2*w for w in range(3)], [F+k for k in range(4)], M)
        A(f"v_mul_f32 v{Lr}, v{F}, v{self.vLs}")
        for w in range(3): A(f"v_fmac_f32 v{Lr}, v{F+1+w}, v{ST+2*w+1}")
        for r in range(4): A(f"v_mul_f32 v{NC+r}, v{F}, v{CR+r}")
        for i in range(16): A(f"v_fma_f32 v{O+i}, v{F}, v{O+i}, -v{NC+(i&3)}")
        for w in range(2):
            for i in range(16): A(f"v_fmac_f32 v{O+i}, v{F+1+w}, v{vA+w*16+i}")
        for i in range(16): A(f"v_fma_f32 v{self.pl(i)}, v{F+3}, v{vA+32+i}, v{O+i}")
        for k in range(6): A(f"v_mov_b32 v{G[k]+3}, s{N}")
        A("s_waitcnt vmcnt(6)")
        self.C("old pair word = partner's tag bits + a stamp within (-2^24, 2^27-2^24) ticks of mine?  Only the two workgroups of")
        self.C("this (b,hkv) write the word and the finisher clears it, so anything else (zero, harness fill) fails the test")
        A(f"v_readfirstlane_b32 s{sTK}, v{T}")
        A(f"v_readfirstlane_b32 s{E+1}, v{T+1}")
        A(f"s_xor_b32 s{E+1}, s{E+1}, s{self.sPB}")
        A(f"s_sub_u32 s{E}, s{N}, s{sTK}")
        A(f"s_subb_u32 s{E+1}, s{N+1}, s{E+1}")
        A(f"s_add_u32 s{E}, s{E}, 0x1000000")
        A(f"s_addc_u32 s{E+1}, s{E+1}, 0")
        A(f"s_lshr_b32 s{E}, s{E}, 27")
        A(f"s_or_b32 s{E}, s{E}, s{E+1}")
        A("s_cbranch_scc0 L_second")
        self.C("first of the pair: publish the tagged partial (write-through) and leave")
        self.gl_partial("store", self.sMS, G)
        A("s_branch L_exit")
        self.label("L_second")
        A(f"v_mov_b32 v{T+2}, s{sTK}", "partner's tag")
        A(f"v_mov_b32 v{T}, 0"); A(f"v_mov_b32 v{T+1}, 0")
        A("s_mov_b64 exec, 1")
        A(f"buffer_store_dwordx2 v[{T}:{T+1}], v{self.vZ}, s[{self.sWS}:{self.sWS+3}], s{self.sPW} offen sc0 sc1", "hand-off consumed: clear the pair word")
        A("s_mov_b64 exec, -1")
        A("s_waitcnt vmcnt(1)")
        self.label("L_retag")
        for k in range(6):
            A(f"v_cmp_ne_u32 vcc, v{T+2}, v{G2[k]+3}")
            A(f"s_or_b64 s[{E}:{E+1}], vcc, " + ("vcc" if k == 0 else f"s[{E}:{E+1}]"))
        A("s_cbranch_scc0 L_merge")
        self.mark(3)
        self.C("the partner has announced and is about to store (it never waits for anybody): read again")
        self.gl_partial("load", self.sPS, G2)
        A("s_waitcnt vmcnt(0)")
        A("s_branch L_retag")
        self.label("L_merge")
        self.factors([M, self.pl(16, G2)], [F, F+1], F+2)
        A(f"v_mul_f32 v{Lr}, v{F}, v{Lr}")
        A(f"v_fmac_f32 v{Lr}, v{F+1}, v{self.pl(17, G2)}")
        A(f"v_rcp_f32 v{Lr}, v{Lr}")
        A("s_nop 0")
        for k in range(2): A(f"v_mul_f32 v{F+k}, v{F+k}, v{Lr}")
        for i in range(16): A(f"v_mul_f32 v{O+i}, v{F}, v{self.pl(i)}")
        for i in range(16): A(f"v_fmac_f32 v{O+i}, v{F+1}, v{self.pl(i, G2)}")
        W = self.vQB + 8
        self.C("lane (q+8h, g) holds out[q][64h+16g+4r+c] in register c*4+r")
        for r in range(4):
            for cp in range(2):
                A(f"v_cvt_pk_bf16_f32 v{W+r*2+cp}, v{O+(2*cp)*4+r}, v{O+(2*cp+1)*4+r}")
        for k in range(2):
            A(f"buffer_store_dwordx4 v[{W+k*4}:{W+k*4+3}], v{self.vOUT}, s[{self.sOUT}:{self.sOUT+3}], s{self.sOB} offen offset:{k*16}")

    def build(self):
        A = self.A; T = self.vT
        P = self.L.append
        P(HEADER.rstrip("\n"))
        P(f"; @launch grid=(256,1,1) block=(256,1,1) lds={max(self.LDS, self.ldsmin)}")
        P(DOC)
        P('.amdgcn_target "amdgcn-amd-amdhsa--gfx950"')
        P(".text"); P(f".globl {KNAME}"); P(".p2align 8"); P(f".type {KNAME},@function"); P(f"{KNAME}:")
        A("s_cmp_ge_u32 s2, 256", "extra workgroups exit")
        A("s_cbranch_scc1 L_end")
        A("s_load_dwordx16 s[4:19], s[0:1], 0", "q qk qv ks kz vs vz out")
        A("s_load_dwordx4 s[20:23], s[0:1], 64", "debug ws")
        self.st(0)
        if self.stamp:
            for k in range(1, 7): A(f"s_mov_b32 s{80+2*k}, 0")
        A(f"v_lshrrev_b32 v{T}, 6, v0")
        A(f"v_and_b32 v{self.vLANE}, 63, v0")
        if self.far:
            A(f"s_and_b32 s{self.sBH}, s2, 127"); A(f"s_lshr_b32 s{self.sHALF}, s2, 7")
        else:
            A(f"s_lshr_b32 s{self.sBH}, s2, 1", "(b,hkv)")
            A(f"s_and_b32 s{self.sHALF}, s2, 1")
        A(f"v_readfirstlane_b32 s{self.sW}, v{T}", "wave id")
        n_, g_ = T+1, T+2
        A(f"v_and_b32 v{n_}, 15, v{self.vLANE}")
        A(f"v_lshrrev_b32 v{g_}, 4, v{self.vLANE}")
        self.C("K lane offset: row 8*(n>>2) + ((n>>1)&1), byte (n&1)*64 + g*16")
        A(f"v_lshrrev_b32 v{T+3}, 2, v{n_}")
        A(f"v_lshlrev_b32 v{self.vOK}, 12, v{T+3}")
        A(f"v_bfe_u32 v{T+3}, v{n_}, 1, 1")
        A(f"v_lshl_add_u32 v{self.vOK}, v{T+3}, 9, v{self.vOK}")
        A(f"v_and_b32 v{T+3}, 1, v{n_}")
        A(f"v_lshl_add_u32 v{self.vOK}, v{T+3}, 6, v{self.vOK}")
        A(f"v_lshl_add_u32 v{self.vOK}, v{g_}, 4, v{self.vOK}")
        A(f"v_lshlrev_b32 v{T+4}, 5, v{T+3}")
        A(f"v_lshl_add_u32 v{T+4}, v{g_}, 3, v{T+4}", "kz (A layout): (n&1)*32 + g*8")
        A(f"v_lshrrev_b32 v{T+3}, 3, v{n_}")
        A(f"v_lshlrev_b32 v{T+5}, 5, v{T+3}")
        A(f"v_lshl_add_u32 v{T+5}, v{g_}, 3, v{T+5}", "ks (B layout): (n>>3)*32 + g*8")
        A(f"v_and_b32 v{T+3}, 7, v{n_}")
        A(f"v_lshl_add_u32 v{T+6}, v{T+3}, 8, v{T+5}", "q (B layout): + (n&7)*256")
        A(f"v_lshlrev_b32 v{self.vOV}, 12, v{g_}")
        A(f"v_lshl_add_u32 v{self.vOV}, v{n_}, 4, v{self.vOV}", "V lane offset: row 8g, byte n*16")
        A(f"v_lshl_add_u32 v{self.vOS}, v{g_}, 2, v{T}")
        A(f"v_lshlrev_b32 v{self.vOS}, 2, v{self.vOS}")
        A(f"v_add_u32 v{self.vOS}, 5120, v{self.vOS}", "5120 + (4g+wave)*4: scale dwords inside a table entry")
        A(f"v_lshlrev_b32 v{self.vLT}, 4, v{self.vLANE}")
        A(f"v_lshlrev_b32 v{T+3}, 9, v{g_}")
        A(f"v_lshl_add_u32 v{T+3}, v{n_}, 4, v{T+3}", "(L>>4)*512 + (L&15)*16")
        A(f"s_mov_b32 s{self.sMASK}, 0x00ff00ff", "lanes that carry a query row")
        A(f"s_mov_b32 s{self.sMASK+1}, 0x00ff00ff")
        A(f"s_mov_b32 s{self.sC}, {f32hex(C_SCALE)}")
        A(f"s_mov_b32 s{self.sNC}, {f32hex(-C_SCALE)}")
        X, Y, Z = self.sX, self.sY, self.sZ
        A(f"s_lshl_b32 s{self.sOFF}, s{self.sBH}, 20")
        A(f"s_lshl_b32 s{X}, s{self.sHALF}, 16")
        A(f"s_add_u32 s{self.sOFF}, s{self.sOFF}, s{X}")
        A(f"s_lshl_b32 s{X}, s{self.sW}, 10")
        A(f"s_add_u32 s{self.sOFF}, s{self.sOFF}, s{X}", "(b,hkv) base + half*64K + wave*1K")
        if self.rot: A(f"s_bfe_u32 s{self.sSTEP}, s2, 0x30003", "start round (wg>>3)&7")
        else: A(f"s_mov_b32 s{self.sSTEP}, 0")
        self.set_step_offsets()
        A(f"s_lshl_b32 s{X}, s{self.sBH}, 12"); A(f"s_lshl_b32 s{Y}, s{self.sHALF}, 8"); A(f"s_add_u32 s{X}, s{X}, s{Y}")
        A(f"s_lshl_b32 s{Y}, s{self.sBH}, 11")
        A(f"s_cmp_lg_u32 s{self.sW}, 0"); A(f"s_cselect_b32 s{Y}, 0x40000, s{Y}", "only wave 0 reads q (the others are out of range: no access)")
        A("s_waitcnt lgkmcnt(0)")
        if self.stamp == 1: self.st(1)
        RAW = self.SL
        self.C("small inputs, two wide loads per array: wave 0 v_zeros + q, wave 1 k_scales, wave 2 k_zeros, wave 3 v_scales;")
        self.C("lane L reads 16 B of round L>>4 (+4), i.e. of group 2*round+half")
        W0 = self.sWS
        A(f"s_cmp_eq_u32 s{self.sW}, 1"); A(f"s_cselect_b32 s{W0}, s10, s16"); A(f"s_cselect_b32 s{W0+1}, s11, s17")
        A(f"s_cmp_eq_u32 s{self.sW}, 2"); A(f"s_cselect_b32 s{W0}, s12, s{W0}"); A(f"s_cselect_b32 s{W0+1}, s13, s{W0+1}")
        A(f"s_cmp_eq_u32 s{self.sW}, 3"); A(f"s_cselect_b32 s{W0}, s14, s{W0}"); A(f"s_cselect_b32 s{W0+1}, s15, s{W0+1}")
        A(f"s_and_b32 s{W0+1}, s{W0+1}, 0xffff")
        A(f"s_mov_b32 s{W0+2}, {8*16*2048*2}", "all four arrays have 524288 bytes")
        A(f"s_mov_b32 s{W0+3}, 0x20000")
        A(f"buffer_load_dwordx4 v[36:39], v{T+3}, s[{W0}:{W0+3}], s{X} offen")
        A(f"buffer_load_dwordx4 v[40:43], v{T+3}, s[{W0}:{W0+3}], s{X} offen offset:2048")
        self.srd(self.sQ, 4, 8*32*4*128*2, "q")
        A(f"buffer_load_dwordx4 v[44:47], v{self.vLT}, s[{self.sQ}:{self.sQ+3}], s{Y} offen")
        A(f"buffer_load_dwordx4 v[48:51], v{self.vLT}, s[{self.sQ}:{self.sQ+3}], s{Y} offen offset:1024")
        self.srd(self.sK, 6, 0x8000000, "qk")
        RA, RBb = self.RB
        for ln in self.capture(lambda: self.ld_k(RA)): P(ln)
        A(f"s_mov_b32 s{self.sCNT}, s{self.sLQ}", "table entry of the first round")
        self.next_round()
        defer = self.capture(lambda: self.ld_k(RBb))
        assert self.n0 == 16
        self.srd(self.sV, 8, 0x8000000, "qv")
        cnt = [0]
        def pemit():
            if self.pthr: self.L.append(f"  s_waitcnt vmcnt({self.pthr-1})")
            self.L.append(defer.pop(0))
        def B(x):
            A(x); cnt[0] += 1
            if len(defer) > self.keep and cnt[0] % self.gap == 0: pemit()
        for k in range(32): A(f"v_mov_b32 v{self.vO+k}, 0")
        for k in range(4): A(f"v_mov_b32 v{self.vCR+k}, 0")
        A(f"v_mov_b32 v{self.vM}, 0xff800000")
        A(f"v_mov_b32 v{self.vLs}, 0")
        self.C("LDS destination: ks/kz -> raw staging [round][256 B]; vs/vz -> table entry [round] + 5120 / 5376")
        A(f"s_add_u32 s{Z}, s{self.sW}, 1"); A(f"s_and_b32 s{Z}, s{Z}, 2", "2 for waves 1,2 (raw), 0 for waves 3,0 (table)")
        A(f"s_mov_b32 s{X}, {self.ENT}")
        A(f"s_cmp_lg_u32 s{Z}, 0")
        A(f"s_cselect_b32 s{X}, 256, s{X}", "round stride")
        A(f"s_lshl_b32 s{Y}, s{self.sW}, 11"); A(f"s_add_u32 s{Y}, s{Y}, {RAW}", "raw base of waves 1,2")
        A(f"s_cmp_eq_u32 s{self.sW}, 3"); A(f"s_cselect_b32 s{Y}, 5120, s{Y}")
        A(f"s_cmp_eq_u32 s{self.sW}, 0"); A(f"s_cselect_b32 s{Y}, 5376, s{Y}")
        A(f"v_mul_lo_u32 v{T+3}, v{g_}, s{X}")
        A(f"v_lshl_add_u32 v{T+3}, v{n_}, 4, v{T+3}")
        A(f"v_add_u32 v{T+3}, s{Y}, v{T+3}")
        A(f"s_lshl_b32 s{X}, s{X}, 2")
        A(f"v_add_u32 v{T+7}, s{X}, v{T+3}")
        A("v_mov_b32 v52, 0"); A("v_mov_b32 v53, 0")
        A(f"ds_write_b64 v52, v[52:53] offset:{self.CTL}", "ticket = done = 0")
        A(f"s_waitcnt vmcnt({self.n0 + 2})")
        A(f"ds_write_b128 v{T+3}, v[36:39]")
        A(f"ds_write_b128 v{T+7}, v[40:43]")
        A(f"s_waitcnt vmcnt({self.n0})")
        A(f"s_cmp_lg_u32 s{self.sW}, 0")
        A("s_cbranch_scc1 L_noq")
        A(f"ds_write_b128 v{self.vLT}, v[44:47] offset:{RAW}")
        A(f"ds_write_b128 v{self.vLT}, v[48:51] offset:{RAW+1024}")
        self.label("L_noq")
        for _ in range(self.n1): pemit()
        A("s_waitcnt lgkmcnt(0)")
        A("s_barrier")
        self.C("table build: B operands bf16(q*ks) hi/lo and C0 = -(q*ks).kz for rounds 2w, 2w+1")
        KSZ = 48
        for i in range(4): A(f"ds_read_b64 v[{16+2*i}:{17+2*i}], v{T+6} offset:{RAW+64*i}")
        A(f"s_lshl_b32 s{X}, s{self.sW}, 9")
        A(f"v_add_u32 v{T+5}, s{X}, v{T+5}")
        A(f"v_add_u32 v{T+4}, s{X}, v{T+4}")
        for gi in range(2):
            for i in range(4):
                r = KSZ + gi*16 + 2*i
                A(f"ds_read_b64 v[{r}:{r+1}], v{T+5} offset:{RAW+2048+gi*256+64*i}")
            for i in range(4):
                r = KSZ + gi*16 + 8 + 2*i
                A(f"ds_read_b64 v[{r}:{r+1}], v{T+4} offset:{RAW+4096+gi*256+64*i}")
        A(f"s_mul_i32 s{Z}, s{self.sW}, {2*self.ENT}")
        A(f"v_add_u32 v{T+7}, s{Z}, v{self.vLT}")
        A("s_waitcnt lgkmcnt(0)")
        QF = list(range(116, 124)) + list(range(252, 256)) + list(range(44, 48))
        for k in range(8):
            B(f"v_lshlrev_b32 v{QF[2*k]}, 16, v{16+k}")
            B(f"v_and_b32 v{QF[2*k+1]}, 0xffff0000, v{16+k}")
        QB = self.vQB
        for gi in range(2):
            KS = KSZ + gi*16; KZ = KS + 8
            for k in range(8):
                t0, t1, t2, t3 = T, T+1, T+2, T+3
                B(f"v_lshlrev_b32 v{t0}, 16, v{KS+k}")
                B(f"v_and_b32 v{t1}, 0xffff0000, v{KS+k}")
                B(f"v_mul_f32 v{t0}, v{t0}, v{QF[2*k]}")
                B(f"v_mul_f32 v{t1}, v{t1}, v{QF[2*k+1]}")
                B(f"v_cvt_pk_bf16_f32 v{QB+k}, v{t0}, v{t1}")
                B(f"v_lshlrev_b32 v{t2}, 16, v{QB+k}")
                B(f"v_and_b32 v{t3}, 0xffff0000, v{QB+k}")
                B(f"v_sub_f32 v{t0}, v{t0}, v{t2}")
                B(f"v_sub_f32 v{t1}, v{t1}, v{t3}")
                B(f"v_cvt_pk_bf16_f32 v{QB+8+k}, v{t0}, v{t1}")
            for k in range(8):
                B(f"v_xor_b32 v{KZ+k}, 0x80008000, v{KZ+k}")
            A("s_nop 1")
            C0 = QB+16
            self.mfma(C0, KZ, QB, None)
            self.mfma(C0, KZ+4, QB+4, C0)
            self.mfma(C0, KZ, QB+8, C0)
            self.mfma(C0, KZ+4, QB+12, C0)
            for it in range(4):
                A(f"ds_write_b128 v{T+7}, v[{QB+it*4}:{QB+it*4+3}] offset:{gi*self.ENT+it*1024}")
            A("s_nop 7")
            A(f"ds_write_b128 v{T+7}, v[{C0}:{C0+3}] offset:{gi*self.ENT+4096}")
            A("s_waitcnt lgkmcnt(0)")
        A("s_barrier")
        self.st(2)
        A(f"v_add_u32 v{T}, s{self.sCNT}, v{self.vLT}")
        for it in range(5):
            A(f"ds_read_b128 v[{QB+it*4}:{QB+it*4+3}], v{T} offset:{it*1024}")
        A(f"v_and_b32 v{T+1}, 7, v{self.vLANE}")
        A(f"v_lshrrev_b32 v{T+2}, 4, v{self.vLANE}")
        A(f"v_lshl_add_u32 v{T+1}, v{T+2}, 3, v{T+1}")
        A(f"v_lshlrev_b32 v{self.vSA}, 5, v{T+1}")
        A(f"s_lshl_b32 s{X}, s{self.sW}, 13"); A(f"s_add_u32 s{X}, s{X}, {self.SB}")
        A(f"v_add_u32 v{self.vSA}, s{X}, v{self.vSA}", "S record address: SB + wave*8K + (g*8+q)*32")
        self.C("================ phase 1: K ================")
        self.kround(RA, "K", defer)
        A(f"s_mov_b32 s{self.sCNT}, 3")
        self.label("L_kloop")
        self.kround(RBb, "K")
        self.kround(RA, "K")
        A(f"s_sub_u32 s{self.sCNT}, s{self.sCNT}, 1")
        A(f"s_cmp_lg_u32 s{self.sCNT}, 0")
        A("s_cbranch_scc1 L_kloop")
        self.kround(RBb, "V")
        self.C("row max over the lane groups; copy it to lanes q+8; request the first round's S and scales")
        self.rd_s()
        self.xlane("v_max_f32", self.vM, T)
        A("s_nop 1")
        self.dpp_hi(self.vM, self.vM)
        A(f"v_mul_f32 v{self.vNM}, s{self.sNC}, v{self.vM}")
        self.C("================ phase 2: V ================")
        A(f"s_mov_b32 s{self.sCNT}, 3")
        self.label("L_vloop")
        self.vround(RA)
        self.vround(RBb)
        A(f"s_sub_u32 s{self.sCNT}, s{self.sCNT}, 1")
        A(f"s_cmp_lg_u32 s{self.sCNT}, 0")
        A("s_cbranch_scc1 L_vloop")
        self.vround(RA)
        self.endgame_setup()
        self.vround(RBb, last=True)
        self.st(3)
        self.endgame()
        if self.stamp:
            A("s_waitcnt vmcnt(0)")
            self.st(6)
            self.label("L_exit")
            self.st_dump()
        else:
            self.label("L_exit")
        self.label("L_end")
        A("s_endpgm")
        P = self.L.append
        P('.section .rodata,"a"'); P(".p2align 6"); P(f".amdhsa_kernel {KNAME}")
        P(f"  .amdhsa_next_free_vgpr {self.NV}")
        P(f"  .amdhsa_next_free_sgpr {100 if self.stamp else 80}")
        P(f"  .amdhsa_accum_offset {self.NV}")
        P("  .amdhsa_group_segment_fixed_size 0")
        P("  .amdhsa_kernarg_size 80")
        P("  .amdhsa_user_sgpr_count 2")
        P("  .amdhsa_user_sgpr_kernarg_segment_ptr 1")
        P("  .amdhsa_system_sgpr_workgroup_id_x 1")
        P("  .amdhsa_float_denorm_mode_32 3")
        P(".end_amdhsa_kernel")
        return "\n".join(self.L) + "\n"

if __name__ == "__main__":
    out = sys.argv[1]
    kw = {}
    for a in sys.argv[2:]:
        k, v = a.split("=")
        kw[k] = int(v) if v.lstrip("-").isdigit() else v
    open(out, "w").write(Gen(**kw).build())
```
